```python
import torch

def _softmax(x, axis=-1):
    return torch.softmax(x, dim=axis)
def _gelu(x):
    return torch.nn.functional.gelu(x, approximate="tanh")
def _silu(x):
    return torch.nn.functional.silu(x)
def _sigmoid(x):
    return torch.sigmoid(x)
def _layernorm(x, axis=-1, eps=1e-5):
    m = x.mean(dim=axis, keepdim=True)
    v = x.var(dim=axis, keepdim=True, unbiased=False)
    return (x - m) / torch.sqrt(v + eps)
def _scatter_add(tgt, idx, src, axis=0):
    return tgt.clone().index_add_(axis, idx, src)
def _segment_sum(src, seg, n):
    out = torch.zeros((n,) + src.shape[1:], dtype=src.dtype)
    return out.index_add_(0, seg, src)
def _pad(x, pw):
    flat = tuple(v for pair in reversed(pw) for v in pair)
    return torch.nn.functional.pad(x, flat)

kernel_name = 'standalone__paged_block_table_kv_pagedattention__decode'

def setup_inputs():

    _w = (lambda a: (lambda t: t.to(torch.bfloat16) if t.is_floating_point() else t)(torch.as_tensor(a)))
    B, Hq, Hkv, Sq, Skv, D = 1, 32, 8, 1, 32768, 128
    bs = 16
    nbps = max(1, Skv // bs)
    num_phys = B * nbps + 4
    bt = torch.randperm(num_phys)[: B * nbps].reshape(B, nbps).to(torch.int64)
    cl = (nbps * bs - (torch.arange(1, B + 1, dtype=torch.int64) * 2654435761) % max(1, nbps * bs // 2)).to(torch.int64)
    return {
        "q": _w((lambda *s: torch.randn(*s, dtype=torch.bfloat16) * 0.8)(B, Hq, Sq, D)),
        "k_cache": _w((lambda *s: torch.randn(*s, dtype=torch.bfloat16) * 0.8)(num_phys, bs, Hkv, D)),
        "v_cache": _w((lambda *s: torch.randn(*s, dtype=torch.bfloat16) * 0.05)(num_phys, bs, Hkv, D)),
        "block_table": _w(bt),
        "context_lens": _w(cl),
    }

def reference(q, k_cache, v_cache, block_table, context_lens):
    B, Hq, Sq, D = q.shape
    bs = k_cache.shape[1]
    Hkv = k_cache.shape[2]
    nbps = block_table.shape[1]
    Skv = nbps * bs
    bt = block_table.reshape(-1)
    k = (lambda x, *d: x.permute(*d))(k_cache[bt].reshape(B, Skv, Hkv, D), 0, 2, 1, 3)
    v = (lambda x, *d: x.permute(*d))(v_cache[bt].reshape(B, Skv, Hkv, D), 0, 2, 1, 3)
    g = Hq // Hkv
    qg = q.reshape(B, Hkv, g, Sq, D)
    scores = torch.einsum("bhgqd,bhkd->bhgqk", qg, k) * (D ** -0.5)
    pos = torch.arange(Skv)
    msk = pos[None, :] < context_lens[:, None]
    scores = torch.where(msk[:, None, None, None, :], scores, -1e9)
    p = _softmax(scores, axis=-1)
    out = torch.einsum("bhgqk,bhkd->bhgqd", p, v)
    return out.reshape(B, Hq, Sq, D)
```

```python
import re

TRANS = ("v_exp_f32", "v_log_f32", "v_rcp_f32", "v_rsq_f32", "v_sqrt_f32", "v_sin_f32", "v_cos_f32")

_reg_re = re.compile(r"^(-|\|)?(v|s|a)(?:\[(\d+):(\d+)\]|(\d+))\|?$")


def parse_reg(tok):
    tok = tok.strip()
    if tok in ("vcc",):
        return {("s", 106), ("s", 107)}
    if tok == "exec":
        return {("s", 126), ("s", 127)}
    if tok == "m0":
        return {("s", 124)}
    m = _reg_re.match(tok)
    if not m:
        return set()
    kind = m.group(2)
    if m.group(3) is not None:
        return {(kind, i) for i in range(int(m.group(3)), int(m.group(4)) + 1)}
    return {(kind, int(m.group(5)))}


def split_ops(s):
    out, depth, cur = [], 0, ""
    for ch in s:
        if ch == "[":
            depth += 1
        elif ch == "]":
            depth -= 1
        if ch == "," and depth == 0:
            out.append(cur.strip())
            cur = ""
        else:
            cur += ch
    if cur.strip():
        out.append(cur.strip())
    return out


class Ins:
    __slots__ = ("text", "mn", "cls", "reads", "writes", "dpp_reads", "srcc", "ab", "trans",
                 "permlane", "readlane", "wide_store_data", "weight", "maskreads")


def analyze(text):
    t = text.split(";")[0].strip()
    parts = t.split(None, 1)
    mn = parts[0]
    rest = parts[1] if len(parts) > 1 else ""
    ops_raw = split_ops(rest)
    ops = []
    for o in ops_raw:
        ops.append(o.split()[0] if o.split() else "")
    I = Ins()
    I.text = text
    I.mn = mn
    I.reads, I.writes, I.dpp_reads, I.srcc, I.ab = set(), set(), set(), set(), set()
    I.trans = False
    I.permlane = False
    I.readlane = False
    I.wide_store_data = set()
    I.weight = 1
    I.maskreads = set()
    regs = [parse_reg(o) for o in ops]
    if mn == "s_nop":
        I.cls = "other"
        I.weight = int(ops[0], 0) + 1
    elif mn.startswith("v_mfma"):
        I.cls = "mfma"
        I.writes = regs[0]
        I.ab = regs[1] | regs[2]
        I.srcc = regs[3] if len(regs) > 3 else set()
        I.reads = I.ab | I.srcc
    elif mn.startswith("v_"):
        I.cls = "valu"
        base = mn.replace("_e32", "").replace("_e64", "").replace("_dpp", "")
        I.trans = base in TRANS
        if base.startswith("v_permlane"):
            I.permlane = True
            I.reads = regs[0] | regs[1]
            I.writes = regs[0] | regs[1]
        elif base.startswith("v_cmp"):
            I.writes = regs[0]
            for r in regs[1:]:
                I.reads |= r
        elif base in ("v_readfirstlane_b32", "v_readlane_b32"):
            I.readlane = True
            I.writes = regs[0]
            for r in regs[1:]:
                I.reads |= r
        else:
            I.writes = regs[0]
            for r in regs[1:]:
                I.reads |= r
            if base.startswith("v_fmac") or base.startswith("v_pk_fmac"):
                I.reads |= regs[0]
            if base in ("v_add_co_u32", "v_addc_co_u32", "v_sub_co_u32"):
                I.writes |= regs[1]
        if mn.endswith("_dpp"):
            I.dpp_reads = regs[1]
    elif mn.startswith("buffer_") or mn.startswith("global_"):
        I.cls = "vmem"
        if "load" in mn:
            I.writes = regs[0]
            for r in regs[1:]:
                I.reads |= r
        elif "atomic" in mn:
            if " sc0" in t:
                I.writes = regs[0]
                for r in regs[1:]:
                    I.reads |= r
            else:
                for r in regs:
                    I.reads |= r
        elif "store" in mn:
            for r in regs:
                I.reads |= r
            if mn.endswith("x4") or mn.endswith("x3"):
                I.wide_store_data = regs[0] if mn.startswith("buffer_") else regs[1]
    elif mn.startswith("ds_"):
        I.cls = "ds"
        if mn.startswith("ds_read") or "permute" in mn or "swizzle" in mn:
            I.writes = regs[0]
            for r in regs[1:]:
                I.reads |= r
        else:
            for r in regs:
                I.reads |= r
    elif mn.startswith("s_load") or mn.startswith("s_buffer_load") or mn.startswith("s_mem"):
        I.cls = "smem"
        I.writes = regs[0]
        for r in regs[1:]:
            I.reads |= r
    elif mn.startswith("s_"):
        I.cls = "salu"
        if mn.startswith("s_cmp") or mn.startswith("s_cbranch") or mn in (
                "s_branch", "s_waitcnt", "s_barrier", "s_endpgm", "s_sleep", "s_setprio"):
            for r in regs:
                I.reads |= r
        else:
            I.writes = regs[0] if regs else set()
            for r in regs[1:]:
                I.reads |= r
    else:
        raise ValueError("unknown instr " + text)
    return I


def vset(s):
    return {r for r in s if r[0] in ("v", "a")}


def sset(s):
    return {r for r in s if r[0] == "s"}


def required(P, C):
    need = 0
    if P.cls == "valu":
        pw_v, pw_s = vset(P.writes), sset(P.writes)
        if C.cls == "valu":
            if pw_v & C.dpp_reads:
                need = max(need, 2)
            if C.permlane and (pw_v & C.reads):
                need = max(need, 2)
            if C.readlane and (pw_v & C.reads):
                need = max(need, 1)
            if P.trans and (pw_v & (C.reads | C.writes)):
                need = max(need, 1)
            if pw_s & C.reads:
                need = max(need, 4 if C.readlane else 2)
        if C.cls == "mfma":
            if pw_v & C.reads:
                need = max(need, 2)
        if C.cls in ("vmem", "ds"):
            if pw_s & C.reads:
                need = max(need, 5)
            if P.trans and (pw_v & C.reads):
                need = max(need, 1)
        if C.cls in ("salu", "smem"):
            if pw_s & C.reads:
                need = max(need, 1)
    if P.cls == "mfma":
        d = P.writes
        if C.cls == "valu":
            if d & (C.reads | C.writes):
                need = max(need, 8)
            if P.srcc & C.writes:
                need = max(need, 3)
        if C.cls in ("vmem", "ds"):
            if d & (C.reads | C.writes):
                need = max(need, 8)
        if C.cls == "mfma":
            if d & C.ab:
                need = max(need, 8)
            if d & C.srcc:
                if C.srcc == d:
                    need = max(need, 0)
                else:
                    need = max(need, 6)
            elif d & C.writes:
                need = max(need, 6)
    if P.cls == "vmem" and P.wide_store_data:
        if C.cls in ("valu", "mfma") and (P.wide_store_data & C.writes):
            need = max(need, 2)
        if C.cls in ("vmem", "ds") and (P.wide_store_data & C.writes):
            need = max(need, 1)
    return need


class Asm:
    def __init__(self):
        self.lines = []
        self.state = []
        self.pending = {}
        self.nops_inserted = 0

    def _age(self, w):
        ns = []
        for e in self.state:
            e[1] += w
            if e[1] < 24:
                ns.append(e)
        self.state = ns

    def raw(self, text):
        self.lines.append(text)

    def comment(self, text):
        self.lines.append("    ; " + text)

    def __call__(self, text):
        for ln in text.strip().split("\n"):
            ln = ln.strip()
            if not ln or ln.startswith(";"):
                if ln:
                    self.lines.append("    " + ln)
                continue
            self._emit(ln)

    def _emit(self, text):
        I = analyze(text)
        need = 0
        for P, age in self.state:
            r = required(P, I)
            if r - age > need:
                need = r - age
        if need > 0:
            self.lines.append("    s_nop %d" % (need - 1))
            self.nops_inserted += need
            self._age(need)
        self.lines.append("    " + text)
        self._age(I.weight)
        self.state.append([I, 0])
        if I.mn.startswith("s_cbranch") or I.mn == "s_branch":
            tgt = text.split()[1]
            self.pending.setdefault(tgt, []).extend([[p, a] for p, a in self.state])
        if I.mn in ("s_branch", "s_endpgm"):
            self.state = []

    def label(self, name):
        self.lines.append(name + ":")
        for p, a in self.pending.pop(name, []):
            self.state.append([p, a])

    def flush(self):
        self.lines.append("    s_nop 7")
        self.lines.append("    s_nop 1")
        self.state = []

    def text(self):
        return "\n".join(self.lines) + "\n"
```

```python
import sys
import struct
from asmlib import Asm

NAME = "standalone__paged_block_table_kv_pagedattention__decode"
HEADER = open("cdna_kernels/%s.s.ref" % NAME).read().split("\n")[:11]

KV_BYTES = 2052 * 32768
NB = 5
NSLOT = 8
BUF0 = 64
SCALE = 1.4426950408889634 * (128 ** -0.5)
LDS_WAVE = 2432
LDS_ML = 8 * LDS_WAVE
LDS_TOTAL = LDS_ML + 256


def f32(x):
    return "0x%08x" % struct.unpack("<I", struct.pack("<f", x))[0]


def kreg(b, g):
    r = BUF0 + 32 * b + 4 * g
    return "v[%d:%d]" % (r, r + 3)


def vreg(b, g):
    r = BUF0 + 32 * b + 16 + 4 * g
    return "v[%d:%d]" % (r, r + 3)


def vreg_half(b, g, u):
    r = BUF0 + 32 * b + 16 + 4 * g + 2 * u
    return "v[%d:%d]" % (r, r + 1)


def issue_loads(a, e, ldflags):
    j = 7 - e
    b = e % NB
    for g in range(4):
        a("buffer_load_dwordx4 %s, v%d, s[20:23], s%d offen%s" % (kreg(b, g), 2 + g, 28 + j, ldflags))
    for g in range(4):
        a("buffer_load_dwordx4 %s, v%d, s[24:27], s%d offen%s" % (vreg(b, g), 6 + g, 28 + j, ldflags))


def cross_quad(a, op, x, y):
    a("v_mov_b32 v%d, v%d" % (y, x))
    a("v_permlane32_swap_b32 v%d, v%d" % (x, y))
    a("%s v%d, v%d, v%d" % (op, x, x, y))
    a("v_mov_b32 v%d, v%d" % (y, x))
    a("v_permlane16_swap_b32 v%d, v%d" % (x, y))
    a("%s v%d, v%d, v%d" % (op, x, x, y))


def cross_quad_multi(a, op, xs, ys):
    for x, y in zip(xs, ys):
        a("v_mov_b32 v%d, v%d" % (y, x))
    for x, y in zip(xs, ys):
        a("v_permlane32_swap_b32 v%d, v%d" % (x, y))
    for x, y in zip(xs, ys):
        a("%s v%d, v%d, v%d" % (op, x, x, y))
    for x, y in zip(xs, ys):
        a("v_mov_b32 v%d, v%d" % (y, x))
    for x, y in zip(xs, ys):
        a("v_permlane16_swap_b32 v%d, v%d" % (x, y))
    for x, y in zip(xs, ys):
        a("%s v%d, v%d, v%d" % (op, x, x, y))


V_M0, V_M1 = 10, 11
V_Q = 12
V_C, V_NINF, V_QUAD = 16, 17, 18
V_M, V_L = 20, 21
V_AL, V_X, V_Y = 19, 22, 23
V_ACC = 24
V_D = 32
V_T = 48
V_B = 52
V_PK = 60


def iteration(a, e, ldflags):
    j = 7 - e
    b = e % NB
    younger = 8 * (min(e + NB - 1, 7) - e)
    a("s_waitcnt vmcnt(%d)" % (younger + 4))
    for g in range(4):
        a("v_mfma_f32_16x16x32_bf16 v[%d:%d], %s, v[%d:%d], 0" % (V_D + 4 * g, V_D + 4 * g + 3, kreg(b, g), V_Q, V_Q + 3))
    a("s_sub_i32 s43, s42, %d" % (4096 * j))
    for g in range(4):
        d = V_D + 4 * g
        t = V_T + g
        a("v_mul_f32_dpp v%d, v%d, v%d quad_perm:[0,0,0,0] row_mask:0xf bank_mask:0xf" % (t, d, V_C))
        for r in range(1, 4):
            a("v_fmac_f32_dpp v%d, v%d, v%d quad_perm:[%d,%d,%d,%d] row_mask:0xf bank_mask:0xf" % (t, d + r, V_C, r, r, r, r))
    a("s_cmp_ge_i32 s43, 16")
    a("s_cbranch_scc1 L_nomask_%d" % e)
    for g in range(4):
        a("s_sub_i32 s44, s43, %d" % (4 * g))
        a("v_cmp_gt_i32_e64 s[%d:%d], s44, v%d" % (46 + 2 * g, 47 + 2 * g, V_QUAD))
    for g in range(4):
        a("v_cndmask_b32_e64 v%d, v%d, v%d, s[%d:%d]" % (V_T + g, V_NINF, V_T + g, 46 + 2 * g, 47 + 2 * g))
    a.label("L_nomask_%d" % e)
    a("v_max3_f32 v%d, v%d, v%d, v%d" % (V_X, V_T, V_T + 1, V_T + 2))
    a("v_max3_f32 v%d, v%d, v%d, v%d" % (V_X, V_X, V_T + 3, V_M))
    cross_quad(a, "v_max_f32", V_X, V_Y)
    a("v_sub_f32 v%d, v%d, v%d" % (V_AL, V_M, V_X))
    for g in range(4):
        a("v_sub_f32 v%d, v%d, v%d" % (V_T + g, V_T + g, V_X))
    a("v_exp_f32 v%d, v%d" % (V_AL, V_AL))
    for g in range(4):
        a("v_exp_f32 v%d, v%d" % (V_T + g, V_T + g))
    a("v_mov_b32 v%d, v%d" % (V_M, V_X))
    for r in range(8):
        a("v_mul_f32 v%d, v%d, v%d" % (V_ACC + r, V_ACC + r, V_AL))
    for g in range(4):
        a("v_cvt_pk_bf16_f32 v%d, v%d, v%d" % (V_PK + g, V_T + g, V_T + g))
    a("v_fma_f32 v%d, v%d, v%d, v%d" % (V_L, V_L, V_AL, V_T))
    a("v_add_f32 v%d, v%d, v%d" % (V_X, V_T + 1, V_T + 2))
    for g in range(4):
        a("v_and_b32 v%d, v%d, v%d" % (V_B + 2 * g, V_PK + g, V_M0))
        a("v_and_b32 v%d, v%d, v%d" % (V_B + 2 * g + 1, V_PK + g, V_M1))
    a("v_add_f32 v%d, v%d, v%d" % (V_L, V_L, V_T + 3))
    a("v_add_f32 v%d, v%d, v%d" % (V_L, V_L, V_X))
    a("s_waitcnt vmcnt(%d)" % younger)
    for g in range(4):
        for u in range(2):
            acc = "v[%d:%d]" % (V_ACC + 4 * u, V_ACC + 4 * u + 3)
            a("v_mfma_f32_16x16x16_bf16 %s, %s, v[%d:%d], %s" % (acc, vreg_half(b, g, u), V_B + 2 * g, V_B + 2 * g + 1, acc))
    if e + NB <= 7:
        issue_loads(a, e + NB, ldflags)


def final_combine(a, s_slice, s_ws, s_out, ldflags):
    a("v_lshrrev_b32 v2, 4, v1")
    a("v_and_b32 v3, 15, v1")
    a("s_lshl_b32 s43, s%d, 14" % s_slice)
    a("v_lshlrev_b32 v4, 12, v2")
    a("v_add_u32 v4, s43, v4")
    a("v_lshl_add_u32 v5, v3, 4, v4")
    for k in range(8):
        a("global_load_dwordx4 v[%d:%d], v4, s[%d:%d] offset:%d%s" % (96 + 4 * k, 99 + 4 * k, s_ws, s_ws + 1, 256 + 512 * k, ldflags))
    for k in range(8):
        a("global_load_dwordx4 v[%d:%d], v5, s[%d:%d] offset:%d%s" % (64 + 4 * k, 67 + 4 * k, s_ws, s_ws + 1, 512 * k, ldflags))
    a("s_lshl_b32 s43, s%d, 7" % s_slice)
    a("v_lshl_add_u32 v6, v3, 3, s43")
    a("s_waitcnt vmcnt(8)")
    m = [96 + 4 * k for k in range(8)]
    l = [97 + 4 * k for k in range(8)]
    a("v_max3_f32 v8, v%d, v%d, v%d" % (m[0], m[1], m[2]))
    a("v_max3_f32 v8, v8, v%d, v%d" % (m[3], m[4]))
    a("v_max3_f32 v8, v8, v%d, v%d" % (m[5], m[6]))
    a("v_max_f32 v8, v8, v%d" % m[7])
    cross_quad(a, "v_max_f32", 8, 9)
    for k in range(8):
        a("v_sub_f32 v%d, v%d, v8" % (m[k], m[k]))
    for k in range(8):
        a("v_exp_f32 v%d, v%d" % (m[k], m[k]))
    a("v_mul_f32 v14, v%d, v%d" % (m[0], l[0]))
    for k in range(1, 8):
        a("v_fmac_f32 v14, v%d, v%d" % (m[k], l[k]))
    a("s_waitcnt vmcnt(0)")
    for c in range(4):
        a("v_mul_f32 v%d, v%d, v%d" % (10 + c, m[0], 64 + c))
    for k in range(1, 8):
        for c in range(4):
            a("v_fmac_f32 v%d, v%d, v%d" % (10 + c, m[k], 64 + 4 * k + c))
    cross_quad_multi(a, "v_add_f32", [10, 11, 12, 13, 14], [20, 21, 22, 23, 24])
    a("v_rcp_f32 v14, v14")
    for c in range(4):
        a("v_mul_f32 v%d, v%d, v14" % (10 + c, 10 + c))
    a("v_cvt_pk_bf16_f32 v16, v10, v11")
    a("v_cvt_pk_bf16_f32 v17, v12, v13")
    a("s_mov_b64 exec, 0xffff")
    a("global_store_dwordx2 v6, v[16:17], s[%d:%d]" % (s_out, s_out + 1))


def gen_main(a, ldflags):
    a("s_cmp_ge_u32 s2, 256")
    a("s_cbranch_scc1 L_end")
    a("s_load_dwordx16 s[4:19], s[0:1], 0")
    a("""
    v_and_b32 v1, 63, v0
    v_lshrrev_b32 v22, 6, v0
    s_bfe_u32 s37, s2, 0x30003
    v_readfirstlane_b32 s39, v22
    s_and_b32 s38, s2, 7
    s_lshr_b32 s43, s2, 6
    s_lshl_b32 s43, s43, 3
    s_or_b32 s38, s38, s43
    s_lshl_b32 s40, s39, 5
    s_add_u32 s40, s40, s38
    s_lshl_b32 s45, s40, 2
    s_lshl_b32 s44, s37, 8
    v_lshrrev_b32 v18, 4, v1
    v_bfe_u32 v22, v1, 2, 2
    v_and_b32 v23, 3, v1
    v_lshlrev_b32 v24, 4, v23
    v_lshl_add_u32 v24, v18, 6, v24
    v_lshl_add_u32 v2, v22, 11, v24
    v_add_u32 v2, s44, v2
    v_add_u32 v3, 0x2000, v2
    v_add_u32 v4, 0x4000, v2
    v_add_u32 v5, 0x6000, v2
    v_and_b32 v25, 15, v1
    v_lshlrev_b32 v25, 4, v25
    v_lshl_add_u32 v6, v18, 11, v25
    v_add_u32 v6, s44, v6
    v_add_u32 v7, 0x2000, v6
    v_add_u32 v8, 0x4000, v6
    v_add_u32 v9, 0x6000, v6
    s_lshl_b32 s44, s37, 10
    v_lshl_add_u32 v26, v22, 8, v24
    v_add_u32 v26, s44, v26
    """)
    a("s_waitcnt lgkmcnt(0)")
    a("s_load_dword s36, s[12:13], 0")
    for j in range(8):
        a("s_load_dword s%d, s[10:11], s45 offset:%d" % (28 + j, 1024 * j))
    a("global_load_dwordx4 v[12:15], v26, s[4:5]")
    a("""
    s_mov_b32 s20, s6
    s_mov_b32 s21, s7
    s_mov_b32 s22, %d
    s_mov_b32 s23, 0x00020000
    s_mov_b32 s24, s8
    s_mov_b32 s25, s9
    s_mov_b32 s26, %d
    s_mov_b32 s27, 0x00020000
    """ % (KV_BYTES, KV_BYTES))
    a("""
    v_and_b32 v24, 1, v23
    v_lshlrev_b32 v24, 4, v24
    v_mov_b32 v25, 0xffff
    v_lshlrev_b32 v25, v24, v25
    v_cmp_gt_u32 vcc, 2, v23
    v_mov_b32 v17, 0xff800000
    v_mov_b32 v20, 0xff7fffff
    v_mov_b32 v21, 0
    v_cndmask_b32 v10, 0, v25, vcc
    v_cndmask_b32 v11, v25, 0, vcc
    """.replace("v_cndmask_b32 v11, v25, 0, vcc", "v_cndmask_b32_e64 v11, v25, 0, vcc"))
    for r in range(8):
        a("v_mov_b32 v%d, 0" % (V_ACC + r))
    a("s_waitcnt lgkmcnt(0)")
    a("""
    s_mov_b32 s44, %s
    s_cmp_lt_i32 s36, 1
    s_cselect_b32 s44, 0, s44
    s_cselect_b32 s36, 0x8000, s36
    s_min_i32 s36, s36, 0x8000
    v_mov_b32 v16, s44
    s_add_u32 s43, s36, 15
    s_lshr_b32 s43, s43, 4
    s_add_u32 s43, s43, 255
    s_sub_u32 s43, s43, s40
    s_lshr_b32 s43, s43, 8
    s_sub_u32 s41, 8, s43
    s_lshl_b32 s43, s40, 4
    s_sub_i32 s42, s36, s43
    """ % f32(SCALE))
    for j in range(8):
        a("s_lshl_b32 s%d, s%d, 15" % (28 + j, 28 + j))
    for e in range(NSLOT):
        a.label("L_pl_%d" % e)
        a("s_cmp_gt_u32 s41, %d" % e)
        a("s_cbranch_scc1 L_pl_%d" % (e + 1))
        if e >= NB:
            a("s_cmp_gt_u32 s41, %d" % (e - NB))
            a("s_cbranch_scc0 L_pl_8")
        issue_loads(a, e, ldflags)
    a.label("L_pl_8")
    for e in range(NSLOT):
        a.label("L_it_%d" % e)
        a("s_cmp_gt_u32 s41, %d" % e)
        a("s_cbranch_scc1 L_it_%d" % (e + 1))
        iteration(a, e, ldflags)
    a.label("L_it_8")
    a("s_waitcnt vmcnt(0)")
    cross_quad(a, "v_add_f32", V_L, V_Y)
    a("""
    s_mul_i32 s43, s39, %d
    v_bfe_u32 v22, v1, 2, 2
    v_and_b32 v23, 3, v1
    v_mul_u32_u24 v32, 152, v22
    v_mul_u32_u24 v33, 36, v18
    v_add3_u32 v32, v32, v33, v23
    v_lshl_add_u32 v32, v32, 2, s43
    s_lshl_b32 s44, s39, 3
    s_add_u32 s44, s44, %d
    v_lshl_add_u32 v33, v22, 6, s44
    """ % (LDS_WAVE, LDS_ML))
    for r in range(4):
        a("ds_write2_b32 v32, v%d, v%d offset0:%d offset1:%d" % (V_ACC + r, V_ACC + 4 + r, 8 * r, 8 * r + 4))
    a("ds_write_b64 v33, v[20:21]")
    a("""
    s_lshr_b32 s43, s39, 1
    s_and_b32 s44, s39, 1
    s_mul_i32 s46, s43, 608
    s_mul_i32 s47, s44, 288
    s_add_u32 s46, s46, s47
    v_bfe_u32 v34, v1, 3, 1
    v_and_b32 v35, 7, v1
    v_mul_u32_u24 v34, 144, v34
    v_lshl_add_u32 v34, v35, 4, v34
    v_add_u32 v34, s46, v34
    s_lshl_b32 s43, s43, 6
    s_add_u32 s43, s43, %d
    v_mov_b32 v35, s43
    """ % LDS_ML)
    a("s_waitcnt lgkmcnt(0)")
    a("s_barrier")
    for q in range(4):
        a("ds_read_b128 v[%d:%d], v35 offset:%d" % (96 + 4 * q, 99 + 4 * q, 16 * q))
    for w in range(8):
        a("ds_read_b128 v[%d:%d], v34 offset:%d" % (64 + 4 * w, 67 + 4 * w, LDS_WAVE * w))
    a("""
    s_lshl_b32 s43, s37, 3
    s_add_u32 s48, s43, s39
    s_lshl_b32 s43, s48, 5
    s_add_u32 s43, s43, s38
    s_lshl_b32 s43, s43, 9
    v_lshl_add_u32 v36, v1, 4, s43
    v_cmp_lt_u32 vcc, 15, v1
    """)
    a("s_waitcnt lgkmcnt(8)")
    m = [96 + 2 * w for w in range(8)]
    l = [97 + 2 * w for w in range(8)]
    a("v_max3_f32 v40, v%d, v%d, v%d" % (m[0], m[1], m[2]))
    a("v_max3_f32 v40, v40, v%d, v%d" % (m[3], m[4]))
    a("v_max3_f32 v40, v40, v%d, v%d" % (m[5], m[6]))
    a("v_max_f32 v40, v40, v%d" % m[7])
    for w in range(8):
        a("v_sub_f32 v%d, v%d, v40" % (m[w], m[w]))
    for w in range(8):
        a("v_exp_f32 v%d, v%d" % (m[w], m[w]))
    a("v_mul_f32 v41, v%d, v%d" % (m[0], l[0]))
    for w in range(1, 8):
        a("v_fmac_f32 v41, v%d, v%d" % (m[w], l[w]))
    a("s_waitcnt lgkmcnt(0)")
    for c in range(4):
        a("v_mul_f32 v%d, v%d, v%d" % (44 + c, m[0], 64 + c))
    for w in range(1, 8):
        for c in range(4):
            a("v_fmac_f32 v%d, v%d, v%d" % (44 + c, m[w], 64 + 4 * w + c))
    a("""
    v_cndmask_b32 v44, v44, v40, vcc
    v_cndmask_b32 v45, v45, v41, vcc
    v_cndmask_b32 v46, v46, v40, vcc
    v_cndmask_b32 v47, v47, v41, vcc
    s_mov_b64 exec, 0xffffff
    global_store_dwordx4 v36, v[44:47], s[18:19]
    """)
    a.label("L_end")
    a("s_endpgm")


def gen_combine(a):
    a("s_cmp_ge_u32 s2, 64")
    a("s_cbranch_scc1 L2_end")
    a("s_load_dwordx2 s[14:15], s[0:1], 40")
    a("s_load_dwordx2 s[18:19], s[0:1], 56")
    a("v_and_b32 v1, 63, v0")
    a("s_waitcnt lgkmcnt(0)")
    final_combine(a, 2, 18, 14, "")
    a.label("L2_end")
    a("s_endpgm")


def kd(name, vgpr, sgpr=102):
    acc = (vgpr + 3) // 4 * 4
    return """.p2align 6
.amdhsa_kernel %s
  .amdhsa_next_free_vgpr %d
  .amdhsa_next_free_sgpr %d
  .amdhsa_accum_offset %d
  .amdhsa_group_segment_fixed_size 0
  .amdhsa_kernarg_size 64
  .amdhsa_user_sgpr_count 2
  .amdhsa_user_sgpr_kernarg_segment_ptr 1
  .amdhsa_system_sgpr_workgroup_id_x 1
.end_amdhsa_kernel
""" % (name, vgpr, sgpr, acc)


def main():
    ldflags = ""
    for arg in sys.argv[2:]:
        if arg.startswith("ld="):
            ldflags = " " + arg[3:].replace("+", " ")
    out = []
    out += HEADER[:9]
    out.append("; @launch kernel=pa_main_kernel grid=(256,1,1) block=(512,1,1) lds=%d" % LDS_TOTAL)
    out.append("; @launch kernel=pa_comb_kernel grid=(64,1,1) block=(64,1,1) lds=0")
    out.append('.amdgcn_target "amdgcn-amd-amdhsa--gfx950"')
    out.append(".text")
    for nm, fn in (("pa_main_kernel", lambda a: gen_main(a, ldflags)), ("pa_comb_kernel", gen_combine)):
        a = Asm()
        fn(a)
        out.append(".globl %s\n.p2align 8\n.type %s,@function\n%s:" % (nm, nm, nm))
        out.append(a.text())
    out.append('.section .rodata,"a"')
    out.append(kd("pa_main_kernel", BUF0 + 32 * NB, 64))
    out.append(kd("pa_comb_kernel", 128, 64))
    open(sys.argv[1], "w").write("\n".join(out))


if __name__ == "__main__":
    main()
```

```python
import sys
import struct
from asmlib import Asm

NAME = "standalone__paged_block_table_kv_pagedattention__decode"
HEADER = open("cdna_kernels/%s.s.ref" % NAME).read().split("\n")[:11]

KV_BYTES = 2052 * 32768
NB = 5
NSLOT = 8
BUF0 = 64
SCALE = 1.4426950408889634 * (128 ** -0.5)
LDS_WAVE = 2432
LDS_ML = 8 * LDS_WAVE
LDS_TOTAL = LDS_ML + 256


def f32(x):
    return "0x%08x" % struct.unpack("<I", struct.pack("<f", x))[0]


def kreg(b, g):
    r = BUF0 + 32 * b + 4 * g
    return "v[%d:%d]" % (r, r + 3)


def vreg(b, g):
    r = BUF0 + 32 * b + 16 + 4 * g
    return "v[%d:%d]" % (r, r + 3)


def vreg_half(b, g, u):
    r = BUF0 + 32 * b + 16 + 4 * g + 2 * u
    return "v[%d:%d]" % (r, r + 1)


DIAG = False
MODE = "two"
def stamp(a, k):
    if DIAG:
        a("s_memrealtime s[%d:%d]" % (64 + 2 * k, 65 + 2 * k))
        a("s_waitcnt lgkmcnt(0)")

def dump_stamps(a, n):
    if not DIAG:
        return
    a("s_mov_b64 exec, 1")
    a("s_lshl_b32 s43, s2, 3")
    a("s_add_u32 s43, s43, s39")
    a("s_lshl_b32 s43, s43, 6")
    a("s_add_u32 s43, s43, 0x4000000")
    a("v_mov_b32 v2, s43")
    for k in range(n):
        a("v_mov_b32 v3, s%d" % (64 + 2 * k))
        a("global_store_dword v2, v3, s[18:19] offset:%d" % (4 * k))
    a("s_getreg_b32 s43, hwreg(HW_REG_XCC_ID)")
    a("v_mov_b32 v3, s43")
    a("global_store_dword v2, v3, s[18:19] offset:56")
    a("s_getreg_b32 s43, hwreg(HW_REG_HW_ID)")
    a("v_mov_b32 v3, s43")
    a("global_store_dword v2, v3, s[18:19] offset:60")

def issue_loads(a, e, ldflags):
    j = 7 - e
    b = e % NB
    for g in range(4):
        a("buffer_load_dwordx4 %s, v%d, s[20:23], s%d offen%s" % (kreg(b, g), 2 + g, 28 + j, ldflags))
    for g in range(4):
        a("buffer_load_dwordx4 %s, v%d, s[24:27], s%d offen%s" % (vreg(b, g), 6 + g, 28 + j, ldflags))


def cross_quad(a, op, x, y):
    a("v_mov_b32 v%d, v%d" % (y, x))
    a("v_permlane32_swap_b32 v%d, v%d" % (x, y))
    a("%s v%d, v%d, v%d" % (op, x, x, y))
    a("v_mov_b32 v%d, v%d" % (y, x))
    a("v_permlane16_swap_b32 v%d, v%d" % (x, y))
    a("%s v%d, v%d, v%d" % (op, x, x, y))


def cross_quad_multi(a, op, xs, ys):
    for x, y in zip(xs, ys):
        a("v_mov_b32 v%d, v%d" % (y, x))
    for x, y in zip(xs, ys):
        a("v_permlane32_swap_b32 v%d, v%d" % (x, y))
    for x, y in zip(xs, ys):
        a("%s v%d, v%d, v%d" % (op, x, x, y))
    for x, y in zip(xs, ys):
        a("v_mov_b32 v%d, v%d" % (y, x))
    for x, y in zip(xs, ys):
        a("v_permlane16_swap_b32 v%d, v%d" % (x, y))
    for x, y in zip(xs, ys):
        a("%s v%d, v%d, v%d" % (op, x, x, y))


V_M0, V_M1 = 10, 11
V_Q = 12
V_C, V_NINF, V_QUAD = 16, 17, 18
V_M, V_L = 20, 21
V_AL, V_X, V_Y = 19, 22, 23
V_ACC = 24
V_D = 32
V_T = 48
V_B = 52
V_PK = 60


def iteration(a, e, ldflags):
    j = 7 - e
    b = e % NB
    younger = 8 * (min(e + NB - 1, 7) - e)
    a("s_waitcnt vmcnt(%d)" % (younger + 4))
    if e == 4:
        stamp(a, 4)
    if e == 7:
        stamp(a, 5)
    for g in range(4):
        a("v_mfma_f32_16x16x32_bf16 v[%d:%d], %s, v[%d:%d], 0" % (V_D + 4 * g, V_D + 4 * g + 3, kreg(b, g), V_Q, V_Q + 3))
    a("s_sub_i32 s43, s42, %d" % (4096 * j))
    for g in range(4):
        d = V_D + 4 * g
        t = V_T + g
        a("v_mul_f32_dpp v%d, v%d, v%d quad_perm:[0,0,0,0] row_mask:0xf bank_mask:0xf" % (t, d, V_C))
        for r in range(1, 4):
            a("v_fmac_f32_dpp v%d, v%d, v%d quad_perm:[%d,%d,%d,%d] row_mask:0xf bank_mask:0xf" % (t, d + r, V_C, r, r, r, r))
    a("s_cmp_ge_i32 s43, 16")
    a("s_cbranch_scc1 L_nomask_%d" % e)
    for g in range(4):
        a("s_sub_i32 s44, s43, %d" % (4 * g))
        a("v_cmp_gt_i32_e64 s[%d:%d], s44, v%d" % (46 + 2 * g, 47 + 2 * g, V_QUAD))
    for g in range(4):
        a("v_cndmask_b32_e64 v%d, v%d, v%d, s[%d:%d]" % (V_T + g, V_NINF, V_T + g, 46 + 2 * g, 47 + 2 * g))
    a.label("L_nomask_%d" % e)
    a("v_max3_f32 v%d, v%d, v%d, v%d" % (V_X, V_T, V_T + 1, V_T + 2))
    a("v_max3_f32 v%d, v%d, v%d, v%d" % (V_X, V_X, V_T + 3, V_M))
    cross_quad(a, "v_max_f32", V_X, V_Y)
    a("v_sub_f32 v%d, v%d, v%d" % (V_AL, V_M, V_X))
    for g in range(4):
        a("v_sub_f32 v%d, v%d, v%d" % (V_T + g, V_T + g, V_X))
    a("v_exp_f32 v%d, v%d" % (V_AL, V_AL))
    for g in range(4):
        a("v_exp_f32 v%d, v%d" % (V_T + g, V_T + g))
    a("v_mov_b32 v%d, v%d" % (V_M, V_X))
    for r in range(8):
        a("v_mul_f32 v%d, v%d, v%d" % (V_ACC + r, V_ACC + r, V_AL))
    for g in range(4):
        a("v_cvt_pk_bf16_f32 v%d, v%d, v%d" % (V_PK + g, V_T + g, V_T + g))
    a("v_fma_f32 v%d, v%d, v%d, v%d" % (V_L, V_L, V_AL, V_T))
    a("v_add_f32 v%d, v%d, v%d" % (V_X, V_T + 1, V_T + 2))
    for g in range(4):
        a("v_and_b32 v%d, v%d, v%d" % (V_B + 2 * g, V_PK + g, V_M0))
        a("v_and_b32 v%d, v%d, v%d" % (V_B + 2 * g + 1, V_PK + g, V_M1))
    a("v_add_f32 v%d, v%d, v%d" % (V_L, V_L, V_T + 3))
    a("v_add_f32 v%d, v%d, v%d" % (V_L, V_L, V_X))
    a("s_waitcnt vmcnt(%d)" % younger)
    for g in range(4):
        for u in range(2):
            acc = "v[%d:%d]" % (V_ACC + 4 * u, V_ACC + 4 * u + 3)
            a("v_mfma_f32_16x16x16_bf16 %s, %s, v[%d:%d], %s" % (acc, vreg_half(b, g, u), V_B + 2 * g, V_B + 2 * g + 1, acc))
    if e + NB <= 7:
        issue_loads(a, e + NB, ldflags)


def final_combine(a, s_slice, s_ws, s_out, ldflags):
    a("v_lshrrev_b32 v2, 4, v1")
    a("v_and_b32 v3, 15, v1")
    a("s_lshl_b32 s43, s%d, 14" % s_slice)
    a("v_lshlrev_b32 v4, 12, v2")
    a("v_add_u32 v4, s43, v4")
    a("v_lshl_add_u32 v5, v3, 4, v4")
    for k in range(8):
        a("global_load_dwordx4 v[%d:%d], v4, s[%d:%d] offset:%d%s" % (96 + 4 * k, 99 + 4 * k, s_ws, s_ws + 1, 256 + 512 * k, ldflags))
    for k in range(8):
        a("global_load_dwordx4 v[%d:%d], v5, s[%d:%d] offset:%d%s" % (64 + 4 * k, 67 + 4 * k, s_ws, s_ws + 1, 512 * k, ldflags))
    a("s_lshl_b32 s43, s%d, 7" % s_slice)
    a("v_lshl_add_u32 v6, v3, 3, s43")
    a("s_waitcnt vmcnt(8)")
    m = [96 + 4 * k for k in range(8)]
    l = [97 + 4 * k for k in range(8)]
    a("v_max3_f32 v8, v%d, v%d, v%d" % (m[0], m[1], m[2]))
    a("v_max3_f32 v8, v8, v%d, v%d" % (m[3], m[4]))
    a("v_max3_f32 v8, v8, v%d, v%d" % (m[5], m[6]))
    a("v_max_f32 v8, v8, v%d" % m[7])
    cross_quad(a, "v_max_f32", 8, 9)
    for k in range(8):
        a("v_sub_f32 v%d, v%d, v8" % (m[k], m[k]))
    for k in range(8):
        a("v_exp_f32 v%d, v%d" % (m[k], m[k]))
    a("v_mul_f32 v14, v%d, v%d" % (m[0], l[0]))
    for k in range(1, 8):
        a("v_fmac_f32 v14, v%d, v%d" % (m[k], l[k]))
    a("s_waitcnt vmcnt(0)")
    for c in range(4):
        a("v_mul_f32 v%d, v%d, v%d" % (10 + c, m[0], 64 + c))
    for k in range(1, 8):
        for c in range(4):
            a("v_fmac_f32 v%d, v%d, v%d" % (10 + c, m[k], 64 + 4 * k + c))
    cross_quad_multi(a, "v_add_f32", [10, 11, 12, 13, 14], [20, 21, 22, 23, 24])
    a("v_rcp_f32 v14, v14")
    for c in range(4):
        a("v_mul_f32 v%d, v%d, v14" % (10 + c, 10 + c))
    a("v_cvt_pk_bf16_f32 v16, v10, v11")
    a("v_cvt_pk_bf16_f32 v17, v12, v13")
    a("s_mov_b64 exec, 0xffff")
    a("global_store_dwordx2 v6, v[16:17], s[%d:%d]" % (s_out, s_out + 1))


def gen_main(a, ldflags):
    a("s_cmp_ge_u32 s2, 256")
    a("s_cbranch_scc1 L_end")
    stamp(a, 0)
    a("s_load_dwordx16 s[4:19], s[0:1], 0")
    a("""
    v_and_b32 v1, 63, v0
    v_lshrrev_b32 v22, 6, v0
    s_bfe_u32 s37, s2, 0x30003
    v_readfirstlane_b32 s39, v22
    s_and_b32 s38, s2, 7
    s_lshr_b32 s43, s2, 6
    s_lshl_b32 s43, s43, 3
    s_or_b32 s38, s38, s43
    s_lshl_b32 s40, s39, 5
    s_add_u32 s40, s40, s38
    s_lshl_b32 s45, s40, 2
    s_lshl_b32 s44, s37, 8
    v_lshrrev_b32 v18, 4, v1
    v_bfe_u32 v22, v1, 2, 2
    v_and_b32 v23, 3, v1
    v_lshlrev_b32 v24, 4, v23
    v_lshl_add_u32 v24, v18, 6, v24
    v_lshl_add_u32 v2, v22, 11, v24
    v_add_u32 v2, s44, v2
    v_add_u32 v3, 0x2000, v2
    v_add_u32 v4, 0x4000, v2
    v_add_u32 v5, 0x6000, v2
    v_and_b32 v25, 15, v1
    v_lshlrev_b32 v25, 4, v25
    v_lshl_add_u32 v6, v18, 11, v25
    v_add_u32 v6, s44, v6
    v_add_u32 v7, 0x2000, v6
    v_add_u32 v8, 0x4000, v6
    v_add_u32 v9, 0x6000, v6
    s_lshl_b32 s44, s37, 10
    v_lshl_add_u32 v26, v22, 8, v24
    v_add_u32 v26, s44, v26
    """)
    a("s_waitcnt lgkmcnt(0)")
    stamp(a, 1)
    a("s_load_dword s36, s[12:13], 0")
    for j in range(8):
        a("s_load_dword s%d, s[10:11], s45 offset:%d" % (28 + j, 1024 * j))
    a("global_load_dwordx4 v[12:15], v26, s[4:5]")
    a("""
    s_mov_b32 s20, s6
    s_mov_b32 s21, s7
    s_mov_b32 s22, %d
    s_mov_b32 s23, 0x00020000
    s_mov_b32 s24, s8
    s_mov_b32 s25, s9
    s_mov_b32 s26, %d
    s_mov_b32 s27, 0x00020000
    """ % (KV_BYTES, KV_BYTES))
    a("""
    v_and_b32 v24, 1, v23
    v_lshlrev_b32 v24, 4, v24
    v_mov_b32 v25, 0xffff
    v_lshlrev_b32 v25, v24, v25
    v_cmp_gt_u32 vcc, 2, v23
    v_mov_b32 v17, 0xff800000
    v_mov_b32 v20, 0xff7fffff
    v_mov_b32 v21, 0
    v_cndmask_b32 v10, 0, v25, vcc
    v_cndmask_b32 v11, v25, 0, vcc
    """.replace("v_cndmask_b32 v11, v25, 0, vcc", "v_cndmask_b32_e64 v11, v25, 0, vcc"))
    for r in range(8):
        a("v_mov_b32 v%d, 0" % (V_ACC + r))
    a("s_waitcnt lgkmcnt(0)")
    stamp(a, 2)
    a("""
    s_mov_b32 s44, %s
    s_cmp_lt_i32 s36, 1
    s_cselect_b32 s44, 0, s44
    s_cselect_b32 s36, 0x8000, s36
    s_min_i32 s36, s36, 0x8000
    v_mov_b32 v16, s44
    s_add_u32 s43, s36, 15
    s_lshr_b32 s43, s43, 4
    s_add_u32 s43, s43, 255
    s_sub_u32 s43, s43, s40
    s_lshr_b32 s43, s43, 8
    s_sub_u32 s41, 8, s43
    s_lshl_b32 s43, s40, 4
    s_sub_i32 s42, s36, s43
    """ % f32(SCALE))
    for j in range(8):
        a("s_lshl_b32 s%d, s%d, 15" % (28 + j, 28 + j))
    for e in range(NSLOT):
        a.label("L_pl_%d" % e)
        a("s_cmp_gt_u32 s41, %d" % e)
        a("s_cbranch_scc1 L_pl_%d" % (e + 1))
        if e >= NB:
            a("s_cmp_gt_u32 s41, %d" % (e - NB))
            a("s_cbranch_scc0 L_pl_8")
        issue_loads(a, e, ldflags)
    a.label("L_pl_8")
    stamp(a, 3)
    for e in range(NSLOT):
        a.label("L_it_%d" % e)
        a("s_cmp_gt_u32 s41, %d" % e)
        a("s_cbranch_scc1 L_it_%d" % (e + 1))
        iteration(a, e, ldflags)
    a.label("L_it_8")
    a("s_waitcnt vmcnt(0)")
    stamp(a, 6)
    cross_quad(a, "v_add_f32", V_L, V_Y)
    a("""
    s_mul_i32 s43, s39, %d
    v_bfe_u32 v22, v1, 2, 2
    v_and_b32 v23, 3, v1
    v_mul_u32_u24 v32, 152, v22
    v_mul_u32_u24 v33, 36, v18
    v_add3_u32 v32, v32, v33, v23
    v_lshl_add_u32 v32, v32, 2, s43
    s_lshl_b32 s44, s39, 3
    s_add_u32 s44, s44, %d
    v_lshl_add_u32 v33, v22, 6, s44
    """ % (LDS_WAVE, LDS_ML))
    for r in range(4):
        a("ds_write2_b32 v32, v%d, v%d offset0:%d offset1:%d" % (V_ACC + r, V_ACC + 4 + r, 8 * r, 8 * r + 4))
    a("ds_write_b64 v33, v[20:21]")
    a("""
    s_lshr_b32 s43, s39, 1
    s_and_b32 s44, s39, 1
    s_mul_i32 s46, s43, 608
    s_mul_i32 s47, s44, 288
    s_add_u32 s46, s46, s47
    v_bfe_u32 v34, v1, 3, 1
    v_and_b32 v35, 7, v1
    v_mul_u32_u24 v34, 144, v34
    v_lshl_add_u32 v34, v35, 4, v34
    v_add_u32 v34, s46, v34
    s_lshl_b32 s43, s43, 6
    s_add_u32 s43, s43, %d
    v_mov_b32 v35, s43
    """ % LDS_ML)
    a("s_waitcnt lgkmcnt(0)")
    a("s_barrier")
    stamp(a, 7)
    for q in range(4):
        a("ds_read_b128 v[%d:%d], v35 offset:%d" % (96 + 4 * q, 99 + 4 * q, 16 * q))
    for w in range(8):
        a("ds_read_b128 v[%d:%d], v34 offset:%d" % (64 + 4 * w, 67 + 4 * w, LDS_WAVE * w))
    a("""
    s_lshl_b32 s43, s37, 3
    s_add_u32 s48, s43, s39
    s_lshl_b32 s43, s48, 5
    s_add_u32 s43, s43, s38
    s_lshl_b32 s43, s43, 9
    v_lshl_add_u32 v36, v1, 4, s43
    v_cmp_lt_u32 vcc, 15, v1
    """)
    a("s_waitcnt lgkmcnt(8)")
    m = [96 + 2 * w for w in range(8)]
    l = [97 + 2 * w for w in range(8)]
    a("v_max3_f32 v40, v%d, v%d, v%d" % (m[0], m[1], m[2]))
    a("v_max3_f32 v40, v40, v%d, v%d" % (m[3], m[4]))
    a("v_max3_f32 v40, v40, v%d, v%d" % (m[5], m[6]))
    a("v_max_f32 v40, v40, v%d" % m[7])
    for w in range(8):
        a("v_sub_f32 v%d, v%d, v40" % (m[w], m[w]))
    for w in range(8):
        a("v_exp_f32 v%d, v%d" % (m[w], m[w]))
    a("v_mul_f32 v41, v%d, v%d" % (m[0], l[0]))
    for w in range(1, 8):
        a("v_fmac_f32 v41, v%d, v%d" % (m[w], l[w]))
    a("s_waitcnt lgkmcnt(0)")
    for c in range(4):
        a("v_mul_f32 v%d, v%d, v%d" % (44 + c, m[0], 64 + c))
    for w in range(1, 8):
        for c in range(4):
            a("v_fmac_f32 v%d, v%d, v%d" % (44 + c, m[w], 64 + 4 * w + c))
    a("""
    v_cndmask_b32 v44, v44, v40, vcc
    v_cndmask_b32 v45, v45, v41, vcc
    v_cndmask_b32 v46, v46, v40, vcc
    v_cndmask_b32 v47, v47, v41, vcc
    s_mov_b64 exec, 0xffffff
    """)
    if MODE == "two":
        a("global_store_dwordx4 v36, v[44:47], s[18:19]")
        if DIAG:
            stamp(a, 8)
            a("s_waitcnt vmcnt(0)")
            stamp(a, 9)
        dump_stamps(a, 10)
    else:
        a("global_store_dwordx4 v36, v[44:47], s[18:19] sc1")
        a("s_mov_b64 exec, -1")
        a("s_waitcnt vmcnt(0)")
        stamp(a, 8)
        a("s_barrier")
        a("s_cmp_lg_u32 s39, 0")
        a("s_cbranch_scc1 L_noat")
        a("s_lshl_b32 s43, s37, 5")
        a("v_mov_b32 v2, s43")
        a("v_mov_b32 v3, 1")
        a("v_mov_b32 v5, 0")
        a("s_mov_b64 exec, 1")
        a("global_atomic_add v4, v2, v3, s[16:17] sc0")
        a("s_waitcnt vmcnt(0)")
        a("ds_write_b32 v5, v4")
        a("s_mov_b64 exec, -1")
        a("s_waitcnt lgkmcnt(0)")
        a.label("L_noat")
        a("s_barrier")
        a("v_mov_b32 v5, 0")
        a("ds_read_b32 v4, v5")
        a("s_waitcnt lgkmcnt(0)")
        a("v_readfirstlane_b32 s43, v4")
        stamp(a, 9)
        a("s_cmp_lg_u32 s43, 31")
        a("s_cbranch_scc1 L_fin")
        final_combine(a, 48, 18, 14, " sc1")
        if DIAG:
            a("s_waitcnt vmcnt(0)")
        a.label("L_fin")
        stamp(a, 10)
        dump_stamps(a, 11)
    a.label("L_end")
    a("s_endpgm")


def gen_combine(a):
    a("s_cmp_ge_u32 s2, 64")
    a("s_cbranch_scc1 L2_end")
    a("s_load_dwordx2 s[14:15], s[0:1], 40")
    a("s_load_dwordx2 s[18:19], s[0:1], 56")
    a("v_and_b32 v1, 63, v0")
    a("s_waitcnt lgkmcnt(0)")
    final_combine(a, 2, 18, 14, "")
    a.label("L2_end")
    a("s_endpgm")


def kd(name, vgpr, sgpr=102):
    acc = (vgpr + 3) // 4 * 4
    return """.p2align 6
.amdhsa_kernel %s
  .amdhsa_next_free_vgpr %d
  .amdhsa_next_free_sgpr %d
  .amdhsa_accum_offset %d
  .amdhsa_group_segment_fixed_size 0
  .amdhsa_kernarg_size 64
  .amdhsa_user_sgpr_count 2
  .amdhsa_user_sgpr_kernarg_segment_ptr 1
  .amdhsa_system_sgpr_workgroup_id_x 1
.end_amdhsa_kernel
""" % (name, vgpr, sgpr, acc)


def main():
    ldflags = ""
    for arg in sys.argv[2:]:
        if arg.startswith("mode="):
            global MODE
            MODE = arg[5:]
        if arg == "diag":
            global DIAG
            DIAG = True
        if arg.startswith("ld="):
            ldflags = " " + arg[3:].replace("+", " ")
    out = []
    out += HEADER[:9]
    if MODE == "two":
        out.append("; @launch kernel=pa_main_kernel grid=(256,1,1) block=(512,1,1) lds=%d" % LDS_TOTAL)
        out.append("; @launch kernel=pa_comb_kernel grid=(64,1,1) block=(64,1,1) lds=0")
        kernels = (("pa_main_kernel", lambda a: gen_main(a, ldflags), BUF0 + 32 * NB, 96), ("pa_comb_kernel", gen_combine, 128, 64))
    else:
        out.append("; @launch grid=(256,1,1) block=(512,1,1) lds=%d" % LDS_TOTAL)
        kernels = ((NAME + "_kernel", lambda a: gen_main(a, ldflags), BUF0 + 32 * NB, 96),)
    out.append('.amdgcn_target "amdgcn-amd-amdhsa--gfx950"')
    out.append(".text")
    for nm, fn, _, _ in kernels:
        a = Asm()
        fn(a)
        out.append(".globl %s\n.p2align 8\n.type %s,@function\n%s:" % (nm, nm, nm))
        out.append(a.text())
    out.append('.section .rodata,"a"')
    for nm, fn, vg, sg in kernels:
        out.append(kd(nm, vg, sg))
    open(sys.argv[1], "w").write("\n".join(out))


if __name__ == "__main__":
    main()
```

```python
import sys
import struct
from asmlib import Asm

NAME = "standalone__paged_block_table_kv_pagedattention__decode"
HEADER = open("cdna_kernels/%s.s.ref" % NAME).read().split("\n")[:11]

KV_BYTES = 2052 * 32768
NB = 5
NSLOT = 8
BUF0 = 64
SCALE = 1.4426950408889634 * (128 ** -0.5)
LDS_WAVE = 2432
LDS_ML = 8 * LDS_WAVE
LDS_TOTAL = LDS_ML + 256


def f32(x):
    return "0x%08x" % struct.unpack("<I", struct.pack("<f", x))[0]


def kreg(b, g):
    r = BUF0 + 32 * b + 4 * g
    return "v[%d:%d]" % (r, r + 3)


def vreg(b, g):
    r = BUF0 + 32 * b + 16 + 4 * g
    return "v[%d:%d]" % (r, r + 3)


def vreg_half(b, g, u):
    r = BUF0 + 32 * b + 16 + 4 * g + 2 * u
    return "v[%d:%d]" % (r, r + 1)


DIAG = False
MODE = "two"
def stamp(a, k):
    if DIAG:
        a("s_memrealtime s[%d:%d]" % (64 + 2 * k, 65 + 2 * k))
        a("s_waitcnt lgkmcnt(0)")

def dump_stamps(a, n):
    if not DIAG:
        return
    a("s_mov_b64 exec, 1")
    if DIAG == 2:
        a("v_mov_b32 v2, 0")
        a("s_not_b32 s43, s64")
        a("v_mov_b32 v3, s43")
        a("global_atomic_umax v2, v3, s[16:17] offset:4")
        for idx, k in enumerate([n - 1, 1, 2, 6, 7, 8, 9]):
            a("v_mov_b32 v3, s%d" % (64 + 2 * k))
            a("global_atomic_umax v2, v3, s[16:17] offset:%d" % (8 + 4 * idx if idx < 6 else 36))
        a("s_not_b32 s43, s%d" % (64 + 2 * 7))
        a("v_mov_b32 v3, s43")
        a("global_atomic_umax v2, v3, s[16:17] offset:40")
        return
    a("s_lshl_b32 s43, s2, 3")
    a("s_add_u32 s43, s43, s39")
    a("s_lshl_b32 s43, s43, 6")
    a("s_add_u32 s43, s43, 0x4000000")
    a("v_mov_b32 v2, s43")
    for k in range(n):
        a("v_mov_b32 v3, s%d" % (64 + 2 * k))
        a("global_store_dword v2, v3, s[18:19] offset:%d" % (4 * k))
    a("s_getreg_b32 s43, hwreg(HW_REG_XCC_ID)")
    a("v_mov_b32 v3, s43")
    a("global_store_dword v2, v3, s[18:19] offset:56")
    a("s_getreg_b32 s43, hwreg(HW_REG_HW_ID)")
    a("v_mov_b32 v3, s43")
    a("global_store_dword v2, v3, s[18:19] offset:60")

def issue_loads(a, e, ldflags):
    j = 7 - e
    b = e % NB
    for g in range(4):
        a("buffer_load_dwordx4 %s, v%d, s[20:23], s%d offen%s" % (kreg(b, g), 2 + g, 28 + j, ldflags))
    for g in range(4):
        a("buffer_load_dwordx4 %s, v%d, s[24:27], s%d offen%s" % (vreg(b, g), 6 + g, 28 + j, ldflags))


def cross_quad(a, op, x, y):
    a("v_mov_b32 v%d, v%d" % (y, x))
    a("v_permlane32_swap_b32 v%d, v%d" % (x, y))
    a("%s v%d, v%d, v%d" % (op, x, x, y))
    a("v_mov_b32 v%d, v%d" % (y, x))
    a("v_permlane16_swap_b32 v%d, v%d" % (x, y))
    a("%s v%d, v%d, v%d" % (op, x, x, y))


def cross_quad_multi(a, op, xs, ys):
    for x, y in zip(xs, ys):
        a("v_mov_b32 v%d, v%d" % (y, x))
    for x, y in zip(xs, ys):
        a("v_permlane32_swap_b32 v%d, v%d" % (x, y))
    for x, y in zip(xs, ys):
        a("%s v%d, v%d, v%d" % (op, x, x, y))
    for x, y in zip(xs, ys):
        a("v_mov_b32 v%d, v%d" % (y, x))
    for x, y in zip(xs, ys):
        a("v_permlane16_swap_b32 v%d, v%d" % (x, y))
    for x, y in zip(xs, ys):
        a("%s v%d, v%d, v%d" % (op, x, x, y))


V_M0, V_M1 = 10, 11
V_Q = 12
V_C, V_NINF, V_QUAD = 16, 17, 18
V_M, V_L = 20, 21
V_AL, V_X, V_Y = 19, 22, 23
V_ACC = 24
V_D = 32
V_T = 48
V_B = 52
V_PK = 60


def iteration(a, e, ldflags):
    j = 7 - e
    b = e % NB
    younger = 8 * (min(e + NB - 1, 7) - e)
    a("s_waitcnt vmcnt(%d)" % (younger + 4))
    if e == 4:
        stamp(a, 4)
    if e == 7:
        stamp(a, 5)
    for g in range(4):
        a("v_mfma_f32_16x16x32_bf16 v[%d:%d], %s, v[%d:%d], 0" % (V_D + 4 * g, V_D + 4 * g + 3, kreg(b, g), V_Q, V_Q + 3))
    a("s_sub_i32 s43, s42, %d" % (4096 * j))
    for g in range(4):
        d = V_D + 4 * g
        t = V_T + g
        a("v_mul_f32_dpp v%d, v%d, v%d quad_perm:[0,0,0,0] row_mask:0xf bank_mask:0xf" % (t, d, V_C))
        for r in range(1, 4):
            a("v_fmac_f32_dpp v%d, v%d, v%d quad_perm:[%d,%d,%d,%d] row_mask:0xf bank_mask:0xf" % (t, d + r, V_C, r, r, r, r))
    a("s_cmp_ge_i32 s43, 16")
    a("s_cbranch_scc1 L_nomask_%d" % e)
    for g in range(4):
        a("s_sub_i32 s44, s43, %d" % (4 * g))
        a("v_cmp_gt_i32_e64 s[%d:%d], s44, v%d" % (46 + 2 * g, 47 + 2 * g, V_QUAD))
    for g in range(4):
        a("v_cndmask_b32_e64 v%d, v%d, v%d, s[%d:%d]" % (V_T + g, V_NINF, V_T + g, 46 + 2 * g, 47 + 2 * g))
    a.label("L_nomask_%d" % e)
    a("v_max3_f32 v%d, v%d, v%d, v%d" % (V_X, V_T, V_T + 1, V_T + 2))
    a("v_max3_f32 v%d, v%d, v%d, v%d" % (V_X, V_X, V_T + 3, V_M))
    cross_quad(a, "v_max_f32", V_X, V_Y)
    a("v_sub_f32 v%d, v%d, v%d" % (V_AL, V_M, V_X))
    for g in range(4):
        a("v_sub_f32 v%d, v%d, v%d" % (V_T + g, V_T + g, V_X))
    a("v_exp_f32 v%d, v%d" % (V_AL, V_AL))
    for g in range(4):
        a("v_exp_f32 v%d, v%d" % (V_T + g, V_T + g))
    a("v_mov_b32 v%d, v%d" % (V_M, V_X))
    for r in range(8):
        a("v_mul_f32 v%d, v%d, v%d" % (V_ACC + r, V_ACC + r, V_AL))
    for g in range(4):
        a("v_cvt_pk_bf16_f32 v%d, v%d, v%d" % (V_PK + g, V_T + g, V_T + g))
    a("v_fma_f32 v%d, v%d, v%d, v%d" % (V_L, V_L, V_AL, V_T))
    a("v_add_f32 v%d, v%d, v%d" % (V_X, V_T + 1, V_T + 2))
    for g in range(4):
        a("v_and_b32 v%d, v%d, v%d" % (V_B + 2 * g, V_PK + g, V_M0))
        a("v_and_b32 v%d, v%d, v%d" % (V_B + 2 * g + 1, V_PK + g, V_M1))
    a("v_add_f32 v%d, v%d, v%d" % (V_L, V_L, V_T + 3))
    a("v_add_f32 v%d, v%d, v%d" % (V_L, V_L, V_X))
    a("s_waitcnt vmcnt(%d)" % younger)
    for g in range(4):
        for u in range(2):
            acc = "v[%d:%d]" % (V_ACC + 4 * u, V_ACC + 4 * u + 3)
            a("v_mfma_f32_16x16x16_bf16 %s, %s, v[%d:%d], %s" % (acc, vreg_half(b, g, u), V_B + 2 * g, V_B + 2 * g + 1, acc))
    if e + NB <= 7:
        issue_loads(a, e + NB, ldflags)


def final_combine(a, s_slice, s_ws, s_out, ldflags):
    a("v_lshrrev_b32 v2, 4, v1")
    a("v_and_b32 v3, 15, v1")
    a("s_lshl_b32 s43, s%d, 14" % s_slice)
    a("v_lshlrev_b32 v4, 12, v2")
    a("v_add_u32 v4, s43, v4")
    a("v_lshl_add_u32 v5, v3, 4, v4")
    for k in range(8):
        a("global_load_dwordx4 v[%d:%d], v4, s[%d:%d] offset:%d%s" % (96 + 4 * k, 99 + 4 * k, s_ws, s_ws + 1, 256 + 512 * k, ldflags))
    for k in range(8):
        a("global_load_dwordx4 v[%d:%d], v5, s[%d:%d] offset:%d%s" % (64 + 4 * k, 67 + 4 * k, s_ws, s_ws + 1, 512 * k, ldflags))
    a("s_lshl_b32 s43, s%d, 7" % s_slice)
    a("v_lshl_add_u32 v6, v3, 3, s43")
    a("s_waitcnt vmcnt(8)")
    m = [96 + 4 * k for k in range(8)]
    l = [97 + 4 * k for k in range(8)]
    a("v_max3_f32 v8, v%d, v%d, v%d" % (m[0], m[1], m[2]))
    a("v_max3_f32 v8, v8, v%d, v%d" % (m[3], m[4]))
    a("v_max3_f32 v8, v8, v%d, v%d" % (m[5], m[6]))
    a("v_max_f32 v8, v8, v%d" % m[7])
    cross_quad(a, "v_max_f32", 8, 9)
    for k in range(8):
        a("v_sub_f32 v%d, v%d, v8" % (m[k], m[k]))
    for k in range(8):
        a("v_exp_f32 v%d, v%d" % (m[k], m[k]))
    a("v_mul_f32 v14, v%d, v%d" % (m[0], l[0]))
    for k in range(1, 8):
        a("v_fmac_f32 v14, v%d, v%d" % (m[k], l[k]))
    a("s_waitcnt vmcnt(0)")
    for c in range(4):
        a("v_mul_f32 v%d, v%d, v%d" % (10 + c, m[0], 64 + c))
    for k in range(1, 8):
        for c in range(4):
            a("v_fmac_f32 v%d, v%d, v%d" % (10 + c, m[k], 64 + 4 * k + c))
    cross_quad_multi(a, "v_add_f32", [10, 11, 12, 13, 14], [20, 21, 22, 23, 24])
    a("v_rcp_f32 v14, v14")
    for c in range(4):
        a("v_mul_f32 v%d, v%d, v14" % (10 + c, 10 + c))
    a("v_cvt_pk_bf16_f32 v16, v10, v11")
    a("v_cvt_pk_bf16_f32 v17, v12, v13")
    a("s_mov_b64 exec, 0xffff")
    a("global_store_dwordx2 v6, v[16:17], s[%d:%d]" % (s_out, s_out + 1))


def gen_main(a, ldflags):
    a("s_cmp_ge_u32 s2, 256")
    a("s_cbranch_scc1 L_end")
    stamp(a, 0)
    a("s_load_dwordx16 s[4:19], s[0:1], 0")
    a("""
    v_and_b32 v1, 63, v0
    v_lshrrev_b32 v22, 6, v0
    s_bfe_u32 s37, s2, 0x30003
    v_readfirstlane_b32 s39, v22
    s_and_b32 s38, s2, 7
    s_lshr_b32 s43, s2, 6
    s_lshl_b32 s43, s43, 3
    s_or_b32 s38, s38, s43
    s_lshl_b32 s40, s39, 5
    s_add_u32 s40, s40, s38
    s_lshl_b32 s45, s40, 2
    s_lshl_b32 s44, s37, 8
    v_lshrrev_b32 v18, 4, v1
    v_bfe_u32 v22, v1, 2, 2
    v_and_b32 v23, 3, v1
    v_lshlrev_b32 v24, 4, v23
    v_lshl_add_u32 v24, v18, 6, v24
    v_lshl_add_u32 v2, v22, 11, v24
    v_add_u32 v2, s44, v2
    v_add_u32 v3, 0x2000, v2
    v_add_u32 v4, 0x4000, v2
    v_add_u32 v5, 0x6000, v2
    v_and_b32 v25, 15, v1
    v_lshlrev_b32 v25, 4, v25
    v_lshl_add_u32 v6, v18, 11, v25
    v_add_u32 v6, s44, v6
    v_add_u32 v7, 0x2000, v6
    v_add_u32 v8, 0x4000, v6
    v_add_u32 v9, 0x6000, v6
    s_lshl_b32 s44, s37, 10
    v_lshl_add_u32 v26, v22, 8, v24
    v_add_u32 v26, s44, v26
    """)
    a("s_waitcnt lgkmcnt(0)")
    stamp(a, 1)
    a("s_load_dword s36, s[12:13], 0")
    for j in range(8):
        a("s_load_dword s%d, s[10:11], s45 offset:%d" % (28 + j, 1024 * j))
    a("global_load_dwordx4 v[12:15], v26, s[4:5]")
    a("""
    s_mov_b32 s20, s6
    s_mov_b32 s21, s7
    s_mov_b32 s22, %d
    s_mov_b32 s23, 0x00020000
    s_mov_b32 s24, s8
    s_mov_b32 s25, s9
    s_mov_b32 s26, %d
    s_mov_b32 s27, 0x00020000
    """ % (KV_BYTES, KV_BYTES))
    a("""
    v_and_b32 v24, 1, v23
    v_lshlrev_b32 v24, 4, v24
    v_mov_b32 v25, 0xffff
    v_lshlrev_b32 v25, v24, v25
    v_cmp_gt_u32 vcc, 2, v23
    v_mov_b32 v17, 0xff800000
    v_mov_b32 v20, 0xff7fffff
    v_mov_b32 v21, 0
    v_cndmask_b32 v10, 0, v25, vcc
    v_cndmask_b32 v11, v25, 0, vcc
    """.replace("v_cndmask_b32 v11, v25, 0, vcc", "v_cndmask_b32_e64 v11, v25, 0, vcc"))
    for r in range(8):
        a("v_mov_b32 v%d, 0" % (V_ACC + r))
    a("s_waitcnt lgkmcnt(0)")
    stamp(a, 2)
    a("""
    s_mov_b32 s44, %s
    s_cmp_lt_i32 s36, 1
    s_cselect_b32 s44, 0, s44
    s_cselect_b32 s36, 0x8000, s36
    s_min_i32 s36, s36, 0x8000
    v_mov_b32 v16, s44
    s_add_u32 s43, s36, 15
    s_lshr_b32 s43, s43, 4
    s_add_u32 s43, s43, 255
    s_sub_u32 s43, s43, s40
    s_lshr_b32 s43, s43, 8
    s_sub_u32 s41, 8, s43
    s_lshl_b32 s43, s40, 4
    s_sub_i32 s42, s36, s43
    """ % f32(SCALE))
    for j in range(8):
        a("s_lshl_b32 s%d, s%d, 15" % (28 + j, 28 + j))
    for e in range(NSLOT):
        a.label("L_pl_%d" % e)
        a("s_cmp_gt_u32 s41, %d" % e)
        a("s_cbranch_scc1 L_pl_%d" % (e + 1))
        if e >= NB:
            a("s_cmp_gt_u32 s41, %d" % (e - NB))
            a("s_cbranch_scc0 L_pl_8")
        issue_loads(a, e, ldflags)
    a.label("L_pl_8")
    stamp(a, 3)
    for e in range(NSLOT):
        a.label("L_it_%d" % e)
        a("s_cmp_gt_u32 s41, %d" % e)
        a("s_cbranch_scc1 L_it_%d" % (e + 1))
        iteration(a, e, ldflags)
    a.label("L_it_8")
    a("s_waitcnt vmcnt(0)")
    stamp(a, 6)
    cross_quad(a, "v_add_f32", V_L, V_Y)
    a("""
    s_mul_i32 s43, s39, %d
    v_bfe_u32 v22, v1, 2, 2
    v_and_b32 v23, 3, v1
    v_mul_u32_u24 v32, 152, v22
    v_mul_u32_u24 v33, 36, v18
    v_add3_u32 v32, v32, v33, v23
    v_lshl_add_u32 v32, v32, 2, s43
    s_lshl_b32 s44, s39, 3
    s_add_u32 s44, s44, %d
    v_lshl_add_u32 v33, v22, 6, s44
    """ % (LDS_WAVE, LDS_ML))
    for r in range(4):
        a("ds_write2_b32 v32, v%d, v%d offset0:%d offset1:%d" % (V_ACC + r, V_ACC + 4 + r, 8 * r, 8 * r + 4))
    a("ds_write_b64 v33, v[20:21]")
    a("""
    s_lshr_b32 s43, s39, 1
    s_and_b32 s44, s39, 1
    s_mul_i32 s46, s43, 608
    s_mul_i32 s47, s44, 288
    s_add_u32 s46, s46, s47
    v_bfe_u32 v34, v1, 3, 1
    v_and_b32 v35, 7, v1
    v_mul_u32_u24 v34, 144, v34
    v_lshl_add_u32 v34, v35, 4, v34
    v_add_u32 v34, s46, v34
    s_lshl_b32 s43, s43, 6
    s_add_u32 s43, s43, %d
    v_mov_b32 v35, s43
    """ % LDS_ML)
    a("s_waitcnt lgkmcnt(0)")
    a("s_barrier")
    stamp(a, 7)
    for q in range(4):
        a("ds_read_b128 v[%d:%d], v35 offset:%d" % (96 + 4 * q, 99 + 4 * q, 16 * q))
    for w in range(8):
        a("ds_read_b128 v[%d:%d], v34 offset:%d" % (64 + 4 * w, 67 + 4 * w, LDS_WAVE * w))
    a("""
    s_lshl_b32 s43, s37, 3
    s_add_u32 s48, s43, s39
    s_lshl_b32 s43, s48, 5
    s_add_u32 s43, s43, s38
    s_lshl_b32 s43, s43, 9
    v_lshl_add_u32 v36, v1, 4, s43
    v_cmp_lt_u32 vcc, 15, v1
    """)
    a("s_waitcnt lgkmcnt(8)")
    m = [96 + 2 * w for w in range(8)]
    l = [97 + 2 * w for w in range(8)]
    a("v_max3_f32 v40, v%d, v%d, v%d" % (m[0], m[1], m[2]))
    a("v_max3_f32 v40, v40, v%d, v%d" % (m[3], m[4]))
    a("v_max3_f32 v40, v40, v%d, v%d" % (m[5], m[6]))
    a("v_max_f32 v40, v40, v%d" % m[7])
    for w in range(8):
        a("v_sub_f32 v%d, v%d, v40" % (m[w], m[w]))
    for w in range(8):
        a("v_exp_f32 v%d, v%d" % (m[w], m[w]))
    a("v_mul_f32 v41, v%d, v%d" % (m[0], l[0]))
    for w in range(1, 8):
        a("v_fmac_f32 v41, v%d, v%d" % (m[w], l[w]))
    a("s_waitcnt lgkmcnt(0)")
    for c in range(4):
        a("v_mul_f32 v%d, v%d, v%d" % (44 + c, m[0], 64 + c))
    for w in range(1, 8):
        for c in range(4):
            a("v_fmac_f32 v%d, v%d, v%d" % (44 + c, m[w], 64 + 4 * w + c))
    a("""
    v_cndmask_b32 v44, v44, v40, vcc
    v_cndmask_b32 v45, v45, v41, vcc
    v_cndmask_b32 v46, v46, v40, vcc
    v_cndmask_b32 v47, v47, v41, vcc
    s_mov_b64 exec, 0xffffff
    """)
    if MODE == "two":
        a("global_store_dwordx4 v36, v[44:47], s[18:19]")
        if DIAG:
            stamp(a, 8)
            a("s_waitcnt vmcnt(0)")
            stamp(a, 9)
        dump_stamps(a, 10)
    else:
        a("global_store_dwordx4 v36, v[44:47], s[18:19] sc1")
        a("s_mov_b64 exec, -1")
        a("s_waitcnt vmcnt(0)")
        stamp(a, 8)
        a("s_barrier")
        a("s_cmp_lg_u32 s39, 0")
        a("s_cbranch_scc1 L_noat")
        a("s_lshl_b32 s43, s37, 5")
        a("v_mov_b32 v2, s43")
        a("v_mov_b32 v3, 1")
        a("v_mov_b32 v5, 0")
        a("s_mov_b64 exec, 1")
        a("global_atomic_add v4, v2, v3, s[16:17] sc0")
        a("s_waitcnt vmcnt(0)")
        a("ds_write_b32 v5, v4")
        a("s_mov_b64 exec, -1")
        a("s_waitcnt lgkmcnt(0)")
        a.label("L_noat")
        a("s_barrier")
        a("v_mov_b32 v5, 0")
        a("ds_read_b32 v4, v5")
        a("s_waitcnt lgkmcnt(0)")
        a("v_readfirstlane_b32 s43, v4")
        stamp(a, 9)
        a("s_cmp_lg_u32 s43, 31")
        a("s_cbranch_scc1 L_fin")
        final_combine(a, 48, 18, 14, " sc1")
        if DIAG:
            a("s_waitcnt vmcnt(0)")
        a.label("L_fin")
        stamp(a, 10)
        dump_stamps(a, 11)
    a.label("L_end")
    a("s_endpgm")


def gen_combine(a):
    a("s_cmp_ge_u32 s2, 64")
    a("s_cbranch_scc1 L2_end")
    a("s_load_dwordx2 s[14:15], s[0:1], 40")
    a("s_load_dwordx2 s[18:19], s[0:1], 56")
    a("v_and_b32 v1, 63, v0")
    a("s_waitcnt lgkmcnt(0)")
    final_combine(a, 2, 18, 14, "")
    a.label("L2_end")
    a("s_endpgm")


def kd(name, vgpr, sgpr=102):
    acc = (vgpr + 3) // 4 * 4
    return """.p2align 6
.amdhsa_kernel %s
  .amdhsa_next_free_vgpr %d
  .amdhsa_next_free_sgpr %d
  .amdhsa_accum_offset %d
  .amdhsa_group_segment_fixed_size 0
  .amdhsa_kernarg_size 64
  .amdhsa_user_sgpr_count 2
  .amdhsa_user_sgpr_kernarg_segment_ptr 1
  .amdhsa_system_sgpr_workgroup_id_x 1
.end_amdhsa_kernel
""" % (name, vgpr, sgpr, acc)


def main():
    ldflags = ""
    for arg in sys.argv[2:]:
        if arg.startswith("mode="):
            global MODE
            MODE = arg[5:]
        if arg == "diag":
            global DIAG
            DIAG = True
        if arg == "diag2":
            DIAG = 2
        if arg.startswith("ld="):
            ldflags = " " + arg[3:].replace("+", " ")
    out = []
    out += HEADER[:9]
    if MODE == "two":
        out.append("; @launch kernel=pa_main_kernel grid=(256,1,1) block=(512,1,1) lds=%d" % LDS_TOTAL)
        out.append("; @launch kernel=pa_comb_kernel grid=(64,1,1) block=(64,1,1) lds=0")
        kernels = (("pa_main_kernel", lambda a: gen_main(a, ldflags), BUF0 + 32 * NB, 96), ("pa_comb_kernel", gen_combine, 128, 64))
    else:
        out.append("; @launch grid=(256,1,1) block=(512,1,1) lds=%d" % LDS_TOTAL)
        kernels = ((NAME + "_kernel", lambda a: gen_main(a, ldflags), BUF0 + 32 * NB, 96),)
    out.append('.amdgcn_target "amdgcn-amd-amdhsa--gfx950"')
    out.append(".text")
    for nm, fn, _, _ in kernels:
        a = Asm()
        fn(a)
        out.append(".globl %s\n.p2align 8\n.type %s,@function\n%s:" % (nm, nm, nm))
        out.append(a.text())
    out.append('.section .rodata,"a"')
    for nm, fn, vg, sg in kernels:
        out.append(kd(nm, vg, sg))
    open(sys.argv[1], "w").write("\n".join(out))


if __name__ == "__main__":
    main()
```

```python
import sys
import struct
from asmlib import Asm

NAME = "standalone__paged_block_table_kv_pagedattention__decode"
HEADER = open("cdna_kernels/%s.s.ref" % NAME).read().split("\n")[:11]

KV_BYTES = 2052 * 32768
NB = 5
NSLOT = 8
BUF0 = 64
SCALE = 1.4426950408889634 * (128 ** -0.5)
LDS_WAVE = 2432
LDS_ML = 8 * LDS_WAVE
LDS_TOTAL = LDS_ML + 256


def f32(x):
    return "0x%08x" % struct.unpack("<I", struct.pack("<f", x))[0]


def kreg(b, g):
    r = BUF0 + 32 * b + 4 * g
    return "v[%d:%d]" % (r, r + 3)


def vreg(b, g):
    r = BUF0 + 32 * b + 16 + 4 * g
    return "v[%d:%d]" % (r, r + 3)


def vreg_half(b, g, u):
    r = BUF0 + 32 * b + 16 + 4 * g + 2 * u
    return "v[%d:%d]" % (r, r + 1)


DIAG = False
MODE = "two"
def stamp(a, k):
    if DIAG:
        a("s_memrealtime s[%d:%d]" % (64 + 2 * k, 65 + 2 * k))
        a("s_waitcnt lgkmcnt(0)")

def dump_stamps(a, n):
    if not DIAG:
        return
    a("s_mov_b64 exec, 1")
    if DIAG == 2:
        a("v_mov_b32 v2, 0")
        a("s_cmp_lg_u32 s39, 0")
        a("s_cbranch_scc1 L_dd2")
        a("s_cmp_gt_u32 s2, 7")
        a("s_cbranch_scc1 L_dd1")
        a("s_not_b32 s43, s64")
        a("v_mov_b32 v3, s43")
        a("global_atomic_umax v2, v3, s[16:17] offset:4")
        a("v_mov_b32 v3, s%d" % (64 + 2 * 2))
        a("global_atomic_umax v2, v3, s[16:17] offset:8")
        a.label("L_dd1")
        a("s_cmp_lg_u32 s62, 31")
        a("s_cbranch_scc1 L_dd2")
        for idx, k in enumerate([6, 7, 8, 9, 10]):
            a("v_mov_b32 v3, s%d" % (64 + 2 * k))
            a("global_atomic_umax v2, v3, s[16:17] offset:%d" % (12 + 4 * idx))
        a.label("L_dd2")
        return
    a("s_lshl_b32 s43, s2, 3")
    a("s_add_u32 s43, s43, s39")
    a("s_lshl_b32 s43, s43, 6")
    a("s_add_u32 s43, s43, 0x4000000")
    a("v_mov_b32 v2, s43")
    for k in range(n):
        a("v_mov_b32 v3, s%d" % (64 + 2 * k))
        a("global_store_dword v2, v3, s[18:19] offset:%d" % (4 * k))
    a("s_getreg_b32 s43, hwreg(HW_REG_XCC_ID)")
    a("v_mov_b32 v3, s43")
    a("global_store_dword v2, v3, s[18:19] offset:56")
    a("s_getreg_b32 s43, hwreg(HW_REG_HW_ID)")
    a("v_mov_b32 v3, s43")
    a("global_store_dword v2, v3, s[18:19] offset:60")

def issue_loads(a, e, ldflags):
    j = 7 - e
    b = e % NB
    for g in range(4):
        a("buffer_load_dwordx4 %s, v%d, s[20:23], s%d offen%s" % (kreg(b, g), 2 + g, 28 + j, ldflags))
    for g in range(4):
        a("buffer_load_dwordx4 %s, v%d, s[24:27], s%d offen%s" % (vreg(b, g), 6 + g, 28 + j, ldflags))


def cross_quad(a, op, x, y):
    a("v_mov_b32 v%d, v%d" % (y, x))
    a("v_permlane32_swap_b32 v%d, v%d" % (x, y))
    a("%s v%d, v%d, v%d" % (op, x, x, y))
    a("v_mov_b32 v%d, v%d" % (y, x))
    a("v_permlane16_swap_b32 v%d, v%d" % (x, y))
    a("%s v%d, v%d, v%d" % (op, x, x, y))


def cross_quad_multi(a, op, xs, ys):
    for x, y in zip(xs, ys):
        a("v_mov_b32 v%d, v%d" % (y, x))
    for x, y in zip(xs, ys):
        a("v_permlane32_swap_b32 v%d, v%d" % (x, y))
    for x, y in zip(xs, ys):
        a("%s v%d, v%d, v%d" % (op, x, x, y))
    for x, y in zip(xs, ys):
        a("v_mov_b32 v%d, v%d" % (y, x))
    for x, y in zip(xs, ys):
        a("v_permlane16_swap_b32 v%d, v%d" % (x, y))
    for x, y in zip(xs, ys):
        a("%s v%d, v%d, v%d" % (op, x, x, y))


V_M0, V_M1 = 10, 11
V_Q = 12
V_C, V_NINF, V_QUAD = 16, 17, 18
V_M, V_L = 20, 21
V_AL, V_X, V_Y = 19, 22, 23
V_ACC = 24
V_D = 32
V_T = 48
V_B = 52
V_PK = 60


def iteration(a, e, ldflags):
    j = 7 - e
    b = e % NB
    younger = 8 * (min(e + NB - 1, 7) - e)
    a("s_waitcnt vmcnt(%d)" % (younger + 4))
    if e == 4:
        stamp(a, 4)
    if e == 7:
        stamp(a, 5)
    for g in range(4):
        a("v_mfma_f32_16x16x32_bf16 v[%d:%d], %s, v[%d:%d], 0" % (V_D + 4 * g, V_D + 4 * g + 3, kreg(b, g), V_Q, V_Q + 3))
    a("s_sub_i32 s43, s42, %d" % (4096 * j))
    for g in range(4):
        d = V_D + 4 * g
        t = V_T + g
        a("v_mul_f32_dpp v%d, v%d, v%d quad_perm:[0,0,0,0] row_mask:0xf bank_mask:0xf" % (t, d, V_C))
        for r in range(1, 4):
            a("v_fmac_f32_dpp v%d, v%d, v%d quad_perm:[%d,%d,%d,%d] row_mask:0xf bank_mask:0xf" % (t, d + r, V_C, r, r, r, r))
    a("s_cmp_ge_i32 s43, 16")
    a("s_cbranch_scc1 L_nomask_%d" % e)
    for g in range(4):
        a("s_sub_i32 s44, s43, %d" % (4 * g))
        a("v_cmp_gt_i32_e64 s[%d:%d], s44, v%d" % (46 + 2 * g, 47 + 2 * g, V_QUAD))
    for g in range(4):
        a("v_cndmask_b32_e64 v%d, v%d, v%d, s[%d:%d]" % (V_T + g, V_NINF, V_T + g, 46 + 2 * g, 47 + 2 * g))
    a.label("L_nomask_%d" % e)
    a("v_max3_f32 v%d, v%d, v%d, v%d" % (V_X, V_T, V_T + 1, V_T + 2))
    a("v_max3_f32 v%d, v%d, v%d, v%d" % (V_X, V_X, V_T + 3, V_M))
    cross_quad(a, "v_max_f32", V_X, V_Y)
    a("v_sub_f32 v%d, v%d, v%d" % (V_AL, V_M, V_X))
    for g in range(4):
        a("v_sub_f32 v%d, v%d, v%d" % (V_T + g, V_T + g, V_X))
    a("v_exp_f32 v%d, v%d" % (V_AL, V_AL))
    for g in range(4):
        a("v_exp_f32 v%d, v%d" % (V_T + g, V_T + g))
    a("v_mov_b32 v%d, v%d" % (V_M, V_X))
    for r in range(8):
        a("v_mul_f32 v%d, v%d, v%d" % (V_ACC + r, V_ACC + r, V_AL))
    for g in range(4):
        a("v_cvt_pk_bf16_f32 v%d, v%d, v%d" % (V_PK + g, V_T + g, V_T + g))
    a("v_fma_f32 v%d, v%d, v%d, v%d" % (V_L, V_L, V_AL, V_T))
    a("v_add_f32 v%d, v%d, v%d" % (V_X, V_T + 1, V_T + 2))
    for g in range(4):
        a("v_and_b32 v%d, v%d, v%d" % (V_B + 2 * g, V_PK + g, V_M0))
        a("v_and_b32 v%d, v%d, v%d" % (V_B + 2 * g + 1, V_PK + g, V_M1))
    a("v_add_f32 v%d, v%d, v%d" % (V_L, V_L, V_T + 3))
    a("v_add_f32 v%d, v%d, v%d" % (V_L, V_L, V_X))
    a("s_waitcnt vmcnt(%d)" % younger)
    for g in range(4):
        for u in range(2):
            acc = "v[%d:%d]" % (V_ACC + 4 * u, V_ACC + 4 * u + 3)
            a("v_mfma_f32_16x16x16_bf16 %s, %s, v[%d:%d], %s" % (acc, vreg_half(b, g, u), V_B + 2 * g, V_B + 2 * g + 1, acc))
    if e + NB <= 7:
        issue_loads(a, e + NB, ldflags)


def final_combine(a, s_slice, s_ws, s_out, ldflags):
    a("v_lshrrev_b32 v2, 4, v1")
    a("v_and_b32 v3, 15, v1")
    a("s_lshl_b32 s43, s%d, 14" % s_slice)
    a("v_lshlrev_b32 v4, 12, v2")
    a("v_add_u32 v4, s43, v4")
    a("v_lshl_add_u32 v5, v3, 4, v4")
    for k in range(8):
        a("global_load_dwordx4 v[%d:%d], v4, s[%d:%d] offset:%d%s" % (96 + 4 * k, 99 + 4 * k, s_ws, s_ws + 1, 256 + 512 * k, ldflags))
    for k in range(8):
        a("global_load_dwordx4 v[%d:%d], v5, s[%d:%d] offset:%d%s" % (64 + 4 * k, 67 + 4 * k, s_ws, s_ws + 1, 512 * k, ldflags))
    a("s_lshl_b32 s43, s%d, 7" % s_slice)
    a("v_lshl_add_u32 v6, v3, 3, s43")
    a("s_waitcnt vmcnt(8)")
    m = [96 + 4 * k for k in range(8)]
    l = [97 + 4 * k for k in range(8)]
    a("v_max3_f32 v8, v%d, v%d, v%d" % (m[0], m[1], m[2]))
    a("v_max3_f32 v8, v8, v%d, v%d" % (m[3], m[4]))
    a("v_max3_f32 v8, v8, v%d, v%d" % (m[5], m[6]))
    a("v_max_f32 v8, v8, v%d" % m[7])
    cross_quad(a, "v_max_f32", 8, 9)
    for k in range(8):
        a("v_sub_f32 v%d, v%d, v8" % (m[k], m[k]))
    for k in range(8):
        a("v_exp_f32 v%d, v%d" % (m[k], m[k]))
    a("v_mul_f32 v14, v%d, v%d" % (m[0], l[0]))
    for k in range(1, 8):
        a("v_fmac_f32 v14, v%d, v%d" % (m[k], l[k]))
    a("s_waitcnt vmcnt(0)")
    for c in range(4):
        a("v_mul_f32 v%d, v%d, v%d" % (10 + c, m[0], 64 + c))
    for k in range(1, 8):
        for c in range(4):
            a("v_fmac_f32 v%d, v%d, v%d" % (10 + c, m[k], 64 + 4 * k + c))
    cross_quad_multi(a, "v_add_f32", [10, 11, 12, 13, 14], [20, 21, 22, 23, 24])
    a("v_rcp_f32 v14, v14")
    for c in range(4):
        a("v_mul_f32 v%d, v%d, v14" % (10 + c, 10 + c))
    a("v_cvt_pk_bf16_f32 v16, v10, v11")
    a("v_cvt_pk_bf16_f32 v17, v12, v13")
    a("s_mov_b64 exec, 0xffff")
    a("global_store_dwordx2 v6, v[16:17], s[%d:%d]" % (s_out, s_out + 1))


def gen_main(a, ldflags):
    a("s_cmp_ge_u32 s2, 256")
    a("s_cbranch_scc1 L_end")
    stamp(a, 0)
    a("s_load_dwordx16 s[4:19], s[0:1], 0")
    a("""
    v_and_b32 v1, 63, v0
    v_lshrrev_b32 v22, 6, v0
    s_bfe_u32 s37, s2, 0x30003
    v_readfirstlane_b32 s39, v22
    s_and_b32 s38, s2, 7
    s_lshr_b32 s43, s2, 6
    s_lshl_b32 s43, s43, 3
    s_or_b32 s38, s38, s43
    s_lshl_b32 s40, s39, 5
    s_add_u32 s40, s40, s38
    s_lshl_b32 s45, s40, 2
    s_lshl_b32 s44, s37, 8
    v_lshrrev_b32 v18, 4, v1
    v_bfe_u32 v22, v1, 2, 2
    v_and_b32 v23, 3, v1
    v_lshlrev_b32 v24, 4, v23
    v_lshl_add_u32 v24, v18, 6, v24
    v_lshl_add_u32 v2, v22, 11, v24
    v_add_u32 v2, s44, v2
    v_add_u32 v3, 0x2000, v2
    v_add_u32 v4, 0x4000, v2
    v_add_u32 v5, 0x6000, v2
    v_and_b32 v25, 15, v1
    v_lshlrev_b32 v25, 4, v25
    v_lshl_add_u32 v6, v18, 11, v25
    v_add_u32 v6, s44, v6
    v_add_u32 v7, 0x2000, v6
    v_add_u32 v8, 0x4000, v6
    v_add_u32 v9, 0x6000, v6
    s_lshl_b32 s44, s37, 10
    v_lshl_add_u32 v26, v22, 8, v24
    v_add_u32 v26, s44, v26
    """)
    a("s_waitcnt lgkmcnt(0)")
    stamp(a, 1)
    a("s_load_dword s36, s[12:13], 0")
    for j in range(8):
        a("s_load_dword s%d, s[10:11], s45 offset:%d" % (28 + j, 1024 * j))
    a("global_load_dwordx4 v[12:15], v26, s[4:5]")
    a("""
    s_mov_b32 s20, s6
    s_mov_b32 s21, s7
    s_mov_b32 s22, %d
    s_mov_b32 s23, 0x00020000
    s_mov_b32 s24, s8
    s_mov_b32 s25, s9
    s_mov_b32 s26, %d
    s_mov_b32 s27, 0x00020000
    """ % (KV_BYTES, KV_BYTES))
    a("""
    v_and_b32 v24, 1, v23
    v_lshlrev_b32 v24, 4, v24
    v_mov_b32 v25, 0xffff
    v_lshlrev_b32 v25, v24, v25
    v_cmp_gt_u32 vcc, 2, v23
    v_mov_b32 v17, 0xff800000
    v_mov_b32 v20, 0xff7fffff
    v_mov_b32 v21, 0
    v_cndmask_b32 v10, 0, v25, vcc
    v_cndmask_b32 v11, v25, 0, vcc
    """.replace("v_cndmask_b32 v11, v25, 0, vcc", "v_cndmask_b32_e64 v11, v25, 0, vcc"))
    for r in range(8):
        a("v_mov_b32 v%d, 0" % (V_ACC + r))
    a("s_waitcnt lgkmcnt(0)")
    stamp(a, 2)
    a("""
    s_mov_b32 s44, %s
    s_cmp_lt_i32 s36, 1
    s_cselect_b32 s44, 0, s44
    s_cselect_b32 s36, 0x8000, s36
    s_min_i32 s36, s36, 0x8000
    v_mov_b32 v16, s44
    s_add_u32 s43, s36, 15
    s_lshr_b32 s43, s43, 4
    s_add_u32 s43, s43, 255
    s_sub_u32 s43, s43, s40
    s_lshr_b32 s43, s43, 8
    s_sub_u32 s41, 8, s43
    s_lshl_b32 s43, s40, 4
    s_sub_i32 s42, s36, s43
    """ % f32(SCALE))
    for j in range(8):
        a("s_lshl_b32 s%d, s%d, 15" % (28 + j, 28 + j))
    for e in range(NSLOT):
        a.label("L_pl_%d" % e)
        a("s_cmp_gt_u32 s41, %d" % e)
        a("s_cbranch_scc1 L_pl_%d" % (e + 1))
        if e >= NB:
            a("s_cmp_gt_u32 s41, %d" % (e - NB))
            a("s_cbranch_scc0 L_pl_8")
        issue_loads(a, e, ldflags)
    a.label("L_pl_8")
    stamp(a, 3)
    for e in range(NSLOT):
        a.label("L_it_%d" % e)
        a("s_cmp_gt_u32 s41, %d" % e)
        a("s_cbranch_scc1 L_it_%d" % (e + 1))
        iteration(a, e, ldflags)
    a.label("L_it_8")
    a("s_waitcnt vmcnt(0)")
    stamp(a, 6)
    cross_quad(a, "v_add_f32", V_L, V_Y)
    a("""
    s_mul_i32 s43, s39, %d
    v_bfe_u32 v22, v1, 2, 2
    v_and_b32 v23, 3, v1
    v_mul_u32_u24 v32, 152, v22
    v_mul_u32_u24 v33, 36, v18
    v_add3_u32 v32, v32, v33, v23
    v_lshl_add_u32 v32, v32, 2, s43
    s_lshl_b32 s44, s39, 3
    s_add_u32 s44, s44, %d
    v_lshl_add_u32 v33, v22, 6, s44
    """ % (LDS_WAVE, LDS_ML))
    for r in range(4):
        a("ds_write2_b32 v32, v%d, v%d offset0:%d offset1:%d" % (V_ACC + r, V_ACC + 4 + r, 8 * r, 8 * r + 4))
    a("ds_write_b64 v33, v[20:21]")
    a("""
    s_lshr_b32 s43, s39, 1
    s_and_b32 s44, s39, 1
    s_mul_i32 s46, s43, 608
    s_mul_i32 s47, s44, 288
    s_add_u32 s46, s46, s47
    v_bfe_u32 v34, v1, 3, 1
    v_and_b32 v35, 7, v1
    v_mul_u32_u24 v34, 144, v34
    v_lshl_add_u32 v34, v35, 4, v34
    v_add_u32 v34, s46, v34
    s_lshl_b32 s43, s43, 6
    s_add_u32 s43, s43, %d
    v_mov_b32 v35, s43
    """ % LDS_ML)
    a("s_waitcnt lgkmcnt(0)")
    a("s_barrier")
    stamp(a, 7)
    for q in range(4):
        a("ds_read_b128 v[%d:%d], v35 offset:%d" % (96 + 4 * q, 99 + 4 * q, 16 * q))
    for w in range(8):
        a("ds_read_b128 v[%d:%d], v34 offset:%d" % (64 + 4 * w, 67 + 4 * w, LDS_WAVE * w))
    a("""
    s_lshl_b32 s43, s37, 3
    s_add_u32 s48, s43, s39
    s_lshl_b32 s43, s48, 5
    s_add_u32 s43, s43, s38
    s_lshl_b32 s43, s43, 9
    v_lshl_add_u32 v36, v1, 4, s43
    v_cmp_lt_u32 vcc, 15, v1
    """)
    a("s_waitcnt lgkmcnt(8)")
    m = [96 + 2 * w for w in range(8)]
    l = [97 + 2 * w for w in range(8)]
    a("v_max3_f32 v40, v%d, v%d, v%d" % (m[0], m[1], m[2]))
    a("v_max3_f32 v40, v40, v%d, v%d" % (m[3], m[4]))
    a("v_max3_f32 v40, v40, v%d, v%d" % (m[5], m[6]))
    a("v_max_f32 v40, v40, v%d" % m[7])
    for w in range(8):
        a("v_sub_f32 v%d, v%d, v40" % (m[w], m[w]))
    for w in range(8):
        a("v_exp_f32 v%d, v%d" % (m[w], m[w]))
    a("v_mul_f32 v41, v%d, v%d" % (m[0], l[0]))
    for w in range(1, 8):
        a("v_fmac_f32 v41, v%d, v%d" % (m[w], l[w]))
    a("s_waitcnt lgkmcnt(0)")
    for c in range(4):
        a("v_mul_f32 v%d, v%d, v%d" % (44 + c, m[0], 64 + c))
    for w in range(1, 8):
        for c in range(4):
            a("v_fmac_f32 v%d, v%d, v%d" % (44 + c, m[w], 64 + 4 * w + c))
    a("""
    v_cndmask_b32 v44, v44, v40, vcc
    v_cndmask_b32 v45, v45, v41, vcc
    v_cndmask_b32 v46, v46, v40, vcc
    v_cndmask_b32 v47, v47, v41, vcc
    s_mov_b64 exec, 0xffffff
    """)
    if MODE == "two":
        a("global_store_dwordx4 v36, v[44:47], s[18:19]")
        if DIAG:
            stamp(a, 8)
            a("s_waitcnt vmcnt(0)")
            stamp(a, 9)
        dump_stamps(a, 10)
    else:
        a("global_store_dwordx4 v36, v[44:47], s[18:19] sc1")
        a("s_mov_b64 exec, -1")
        a("s_waitcnt vmcnt(0)")
        stamp(a, 8)
        a("s_barrier")
        a("s_cmp_lg_u32 s39, 0")
        a("s_cbranch_scc1 L_noat")
        a("s_lshl_b32 s43, s37, 5")
        a("v_mov_b32 v2, s43")
        a("v_mov_b32 v3, 1")
        a("v_mov_b32 v5, 0")
        a("s_mov_b64 exec, 1")
        a("global_atomic_add v4, v2, v3, s[16:17] sc0")
        a("s_waitcnt vmcnt(0)")
        a("ds_write_b32 v5, v4")
        a("s_mov_b64 exec, -1")
        a("s_waitcnt lgkmcnt(0)")
        a.label("L_noat")
        a("s_barrier")
        a("v_mov_b32 v5, 0")
        a("ds_read_b32 v4, v5")
        a("s_waitcnt lgkmcnt(0)")
        a("v_readfirstlane_b32 s62, v4")
        stamp(a, 9)
        a("s_cmp_lg_u32 s62, 31")
        a("s_cbranch_scc1 L_fin")
        final_combine(a, 48, 18, 14, " sc1")
        if DIAG:
            a("s_waitcnt vmcnt(0)")
        a.label("L_fin")
        stamp(a, 10)
        dump_stamps(a, 11)
    a.label("L_end")
    a("s_endpgm")


def gen_combine(a):
    a("s_cmp_ge_u32 s2, 64")
    a("s_cbranch_scc1 L2_end")
    a("s_load_dwordx2 s[14:15], s[0:1], 40")
    a("s_load_dwordx2 s[18:19], s[0:1], 56")
    a("v_and_b32 v1, 63, v0")
    a("s_waitcnt lgkmcnt(0)")
    final_combine(a, 2, 18, 14, "")
    a.label("L2_end")
    a("s_endpgm")


def kd(name, vgpr, sgpr=102):
    acc = (vgpr + 3) // 4 * 4
    return """.p2align 6
.amdhsa_kernel %s
  .amdhsa_next_free_vgpr %d
  .amdhsa_next_free_sgpr %d
  .amdhsa_accum_offset %d
  .amdhsa_group_segment_fixed_size 0
  .amdhsa_kernarg_size 64
  .amdhsa_user_sgpr_count 2
  .amdhsa_user_sgpr_kernarg_segment_ptr 1
  .amdhsa_system_sgpr_workgroup_id_x 1
.end_amdhsa_kernel
""" % (name, vgpr, sgpr, acc)


def main():
    ldflags = ""
    for arg in sys.argv[2:]:
        if arg.startswith("mode="):
            global MODE
            MODE = arg[5:]
        if arg == "diag":
            global DIAG
            DIAG = True
        if arg == "diag2":
            DIAG = 2
        if arg.startswith("ld="):
            ldflags = " " + arg[3:].replace("+", " ")
    out = []
    out += HEADER[:9]
    if MODE == "two":
        out.append("; @launch kernel=pa_main_kernel grid=(256,1,1) block=(512,1,1) lds=%d" % LDS_TOTAL)
        out.append("; @launch kernel=pa_comb_kernel grid=(64,1,1) block=(64,1,1) lds=0")
        kernels = (("pa_main_kernel", lambda a: gen_main(a, ldflags), BUF0 + 32 * NB, 96), ("pa_comb_kernel", gen_combine, 128, 64))
    else:
        out.append("; @launch grid=(256,1,1) block=(512,1,1) lds=%d" % LDS_TOTAL)
        kernels = ((NAME + "_kernel", lambda a: gen_main(a, ldflags), BUF0 + 32 * NB, 96),)
    out.append('.amdgcn_target "amdgcn-amd-amdhsa--gfx950"')
    out.append(".text")
    for nm, fn, _, _ in kernels:
        a = Asm()
        fn(a)
        out.append(".globl %s\n.p2align 8\n.type %s,@function\n%s:" % (nm, nm, nm))
        out.append(a.text())
    out.append('.section .rodata,"a"')
    for nm, fn, vg, sg in kernels:
        out.append(kd(nm, vg, sg))
    open(sys.argv[1], "w").write("\n".join(out))


if __name__ == "__main__":
    main()
```

```python
import sys
import struct
from asmlib import Asm

NAME = "standalone__paged_block_table_kv_pagedattention__decode"
HEADER = open("cdna_kernels/%s.s.ref" % NAME).read().split("\n")[:9]

KV_BYTES = 2052 * 32768
NB = 5
BUF0 = 64
SCALE = 1.4426950408889634 * (128 ** -0.5)
ML_BASE = 512 << 10
LDS_WAVE = 2432
LDS_ML = 8 * LDS_WAVE
LDS_TOTAL = LDS_ML + 256
RPS = 10

OPT = dict(diag=0, ld=" nt", nh="32,32,32,32,32,32,32,32")

S_BT = 28
S_S, S_W, S_I, S_E0, S_LIM0 = 38, 39, 40, 41, 42
S_STR = 45
S_MASK = 46
S_ST = 54
S_CL, S_H = 66, 67
S_N, S_B = 75, 76
V_M0, V_M1 = 10, 11
V_Q = 12
V_C, V_NINF, V_QUAD = 16, 17, 18
V_AL = 19
V_M, V_L = 20, 21
V_X, V_Y = 22, 23
V_ACC = 24
V_D = 32
V_T = 48
V_B = 52


def f32(x):
    return "0x%08x" % struct.unpack("<I", struct.pack("<f", x))[0]


def kreg(b, g):
    r = BUF0 + 32 * b + 4 * g
    return "v[%d:%d]" % (r, r + 3)


def vreg(b, g):
    r = BUF0 + 32 * b + 16 + 4 * g
    return "v[%d:%d]" % (r, r + 3)


def vreg_half(b, g, u):
    r = BUF0 + 32 * b + 16 + 4 * g + 2 * u
    return "v[%d:%d]" % (r, r + 1)


def stamp(a, k):
    if OPT["diag"]:
        a("s_memrealtime s[94:95]")
        a("s_waitcnt lgkmcnt(0)")
        a("s_mov_b32 s%d, s94" % (S_ST + k))


def dump_stamps(a, n):
    if not OPT["diag"]:
        return
    a("s_mov_b64 exec, 1")
    a("s_lshl_b32 s43, s2, 3")
    a("s_add_u32 s43, s43, s%d" % S_W)
    a("s_lshl_b32 s43, s43, 6")
    a("s_add_u32 s43, s43, 0x4000000")
    a("v_mov_b32 v2, s43")
    for k in range(n):
        a("v_mov_b32 v3, s%d" % (S_ST + k))
        a("global_store_dword v2, v3, s[18:19] offset:%d" % (4 * k))
    a("s_getreg_b32 s43, hwreg(HW_REG_XCC_ID)")
    a("v_mov_b32 v3, s43")
    a("global_store_dword v2, v3, s[18:19] offset:56")
    a("v_mov_b32 v3, s%d" % S_H)
    a("global_store_dword v2, v3, s[18:19] offset:60")


def issue_loads(a, e, NSLOT):
    j = NSLOT - 1 - e
    b = e % NB
    for g in range(4):
        a("buffer_load_dwordx4 %s, v%d, s[20:23], s%d offen%s" % (kreg(b, g), 2 + g, S_BT + j, OPT["ld"]))
    for g in range(4):
        a("buffer_load_dwordx4 %s, v%d, s[24:27], s%d offen%s" % (vreg(b, g), 6 + g, S_BT + j, OPT["ld"]))


def xq(a, op, xs, ys):
    for sw in ("v_permlane32_swap_b32", "v_permlane16_swap_b32"):
        for x, y in zip(xs, ys):
            a("v_mov_b32 v%d, v%d" % (y, x))
        for x, y in zip(xs, ys):
            a("%s v%d, v%d" % (sw, x, y))
        for x, y in zip(xs, ys):
            a("%s v%d, v%d, v%d" % (op, x, x, y))


def iteration(a, e, NSLOT):
    j = NSLOT - 1 - e
    b = e % NB
    younger = 8 * (min(e + NB - 1, NSLOT - 1) - e)
    a("s_waitcnt vmcnt(%d)" % (younger + 4))
    if e == NSLOT - 4:
        stamp(a, 4)
    if e == NSLOT - 1:
        stamp(a, 5)
    for g in range(4):
        a("v_mfma_f32_16x16x32_bf16 v[%d:%d], %s, v[%d:%d], 0" % (V_D + 4 * g, V_D + 4 * g + 3, kreg(b, g), V_Q, V_Q + 3))
    a("s_mul_i32 s43, s%d, %d" % (S_STR, 16 * j))
    a("s_sub_i32 s43, s%d, s43" % S_LIM0)
    for g in range(4):
        d = V_D + 4 * g
        t = V_T + g
        a("v_mul_f32_dpp v%d, v%d, v%d quad_perm:[0,0,0,0] row_mask:0xf bank_mask:0xf" % (t, d, V_C))
        for r in range(1, 4):
            a("v_fmac_f32_dpp v%d, v%d, v%d quad_perm:[%d,%d,%d,%d] row_mask:0xf bank_mask:0xf" % (t, d + r, V_C, r, r, r, r))
    a("s_cmp_ge_i32 s43, 16")
    a("s_cbranch_scc1 L_nomask_%d" % e)
    for g in range(4):
        a("s_sub_i32 s44, s43, %d" % (4 * g))
        a("v_cmp_gt_i32_e64 s[%d:%d], s44, v%d" % (S_MASK + 2 * g, S_MASK + 1 + 2 * g, V_QUAD))
    for g in range(4):
        a("v_cndmask_b32_e64 v%d, v%d, v%d, s[%d:%d]" % (V_T + g, V_NINF, V_T + g, S_MASK + 2 * g, S_MASK + 1 + 2 * g))
    a.label("L_nomask_%d" % e)
    a("v_max3_f32 v%d, v%d, v%d, v%d" % (V_X, V_T, V_T + 1, V_T + 2))
    a("v_max3_f32 v%d, v%d, v%d, v%d" % (V_X, V_X, V_T + 3, V_M))
    xq(a, "v_max_f32", [V_X], [V_Y])
    a("v_sub_f32 v%d, v%d, v%d" % (V_AL, V_M, V_X))
    for g in range(4):
        a("v_sub_f32 v%d, v%d, v%d" % (V_T + g, V_T + g, V_X))
    a("v_exp_f32 v%d, v%d" % (V_AL, V_AL))
    for g in range(4):
        a("v_exp_f32 v%d, v%d" % (V_T + g, V_T + g))
    a("v_mov_b32 v%d, v%d" % (V_M, V_X))
    for r in range(8):
        a("v_mul_f32 v%d, v%d, v%d" % (V_ACC + r, V_ACC + r, V_AL))
    for g in range(4):
        a("v_cvt_pk_bf16_f32 v%d, v%d, v%d" % (V_D + g, V_T + g, V_T + g))
    a("v_fma_f32 v%d, v%d, v%d, v%d" % (V_L, V_L, V_AL, V_T))
    a("v_add_f32 v%d, v%d, v%d" % (V_X, V_T + 1, V_T + 2))
    for g in range(4):
        a("v_and_b32 v%d, v%d, v%d" % (V_B + 2 * g, V_D + g, V_M0))
        a("v_and_b32 v%d, v%d, v%d" % (V_B + 2 * g + 1, V_D + g, V_M1))
    a("v_add_f32 v%d, v%d, v%d" % (V_L, V_L, V_T + 3))
    a("v_add_f32 v%d, v%d, v%d" % (V_L, V_L, V_X))
    a("s_waitcnt vmcnt(%d)" % younger)
    for g in range(4):
        for u in range(2):
            acc = "v[%d:%d]" % (V_ACC + 4 * u, V_ACC + 4 * u + 3)
            a("v_mfma_f32_16x16x16_bf16 %s, %s, v[%d:%d], %s" % (acc, vreg_half(b, g, u), V_B + 2 * g, V_B + 2 * g + 1, acc))
    if e + NB <= NSLOT - 1:
        issue_loads(a, e + NB, NSLOT)


def gen(a):
    nh = [int(x) for x in OPT["nh"].split(",")]
    assert sum(nh) == 256 and all(x % 2 == 0 for x in nh) and max(nh) <= 4 * RPS
    B = [sum(nh[:h]) for h in range(8)]
    NSLOT = -(-2048 // (8 * min(nh)))
    assert NSLOT <= 10
    FIRST = NSLOT - 5
    a("s_cmp_ge_u32 s2, 256")
    a("s_cbranch_scc1 L_end")
    stamp(a, 0)
    a("s_load_dwordx16 s[4:19], s[0:1], 0")
    a("v_and_b32 v1, 63, v0")
    a("v_lshrrev_b32 v22, 6, v0")
    a("s_mov_b32 s%d, 0" % S_H)
    a("v_readfirstlane_b32 s39, v22")
    a("s_mov_b32 s%d, 0" % S_B)
    a("s_mov_b32 s%d, %d" % (S_N, nh[0]))
    for h in range(1, 8):
        a("s_cmp_ge_u32 s2, %d" % B[h])
        a("s_cselect_b32 s%d, %d, s%d" % (S_H, h, S_H))
        a("s_cselect_b32 s%d, %d, s%d" % (S_B, B[h], S_B))
        a("s_cselect_b32 s%d, %d, s%d" % (S_N, nh[h], S_N))
    a("""
    s_sub_u32 s38, s2, s76
    s_mul_i32 s40, s39, s75
    s_add_u32 s40, s40, s38
    s_lshl_b32 s45, s75, 3
    s_lshl_b32 s44, s67, 8
    v_lshrrev_b32 v18, 4, v1
    v_bfe_u32 v22, v1, 2, 2
    v_and_b32 v23, 3, v1
    v_lshlrev_b32 v24, 4, v23
    v_lshl_add_u32 v24, v18, 6, v24
    v_lshl_add_u32 v2, v22, 11, v24
    v_add_u32 v2, s44, v2
    v_add_u32 v3, 0x2000, v2
    v_add_u32 v4, 0x4000, v2
    v_add_u32 v5, 0x6000, v2
    v_and_b32 v25, 15, v1
    v_lshlrev_b32 v25, 4, v25
    v_lshl_add_u32 v6, v18, 11, v25
    v_add_u32 v6, s44, v6
    v_add_u32 v7, 0x2000, v6
    v_add_u32 v8, 0x4000, v6
    v_add_u32 v9, 0x6000, v6
    s_lshl_b32 s44, s67, 10
    v_lshl_add_u32 v26, v22, 8, v24
    v_add_u32 v26, s44, v26
    s_mov_b32 s43, s40
    """)
    for j in range(NSLOT):
        a("s_min_u32 s44, s43, 0x7ff")
        a("s_lshl_b32 s%d, s44, 2" % (80 + j))
        if j < NSLOT - 1:
            a("s_add_u32 s43, s43, s45")
    a("s_waitcnt lgkmcnt(0)")
    stamp(a, 1)
    a("s_load_dword s%d, s[12:13], 0" % S_CL)
    for j in range(NSLOT):
        a("s_load_dword s%d, s[10:11], s%d" % (S_BT + j, 80 + j))
    a("global_load_dwordx4 v[12:15], v26, s[4:5]")
    a("""
    s_mov_b32 s20, s6
    s_mov_b32 s21, s7
    s_mov_b32 s22, %d
    s_mov_b32 s23, 0x00020000
    s_mov_b32 s24, s8
    s_mov_b32 s25, s9
    s_mov_b32 s26, %d
    s_mov_b32 s27, 0x00020000
    v_and_b32 v24, 1, v23
    v_lshlrev_b32 v24, 4, v24
    v_mov_b32 v25, 0xffff
    v_lshlrev_b32 v25, v24, v25
    v_cmp_gt_u32 vcc, 2, v23
    v_mov_b32 v17, 0xff800000
    v_mov_b32 v20, 0xff7fffff
    v_mov_b32 v21, 0
    v_cndmask_b32 v10, 0, v25, vcc
    v_cndmask_b32_e64 v11, v25, 0, vcc
    """ % (KV_BYTES, KV_BYTES))
    for r in range(8):
        a("v_mov_b32 v%d, 0" % (V_ACC + r))
    a("s_waitcnt lgkmcnt(0)")
    stamp(a, 2)
    a("""
    s_mov_b32 s44, %s
    s_cmp_lt_i32 s66, 1
    s_cselect_b32 s44, 0, s44
    s_cselect_b32 s66, 0x8000, s66
    s_min_i32 s66, s66, 0x8000
    v_mov_b32 v16, s44
    s_lshl_b32 s43, s40, 4
    s_sub_i32 s42, s66, s43
    s_lshl_b32 s77, s45, 4
    s_mov_b32 s43, s42
    s_mov_b32 s41, %d
    """ % (f32(SCALE), NSLOT))
    for j in range(NSLOT):
        a("s_cmp_gt_i32 s43, 0")
        a("s_subb_u32 s41, s41, 0")
        if j < NSLOT - 1:
            a("s_sub_i32 s43, s43, s77")
        a("s_lshl_b32 s%d, s%d, 15" % (S_BT + j, S_BT + j))
    a("s_cmp_ge_u32 s41, %d" % FIRST)
    a("s_cbranch_scc1 L_pl_%d" % FIRST)
    for e in range(NSLOT):
        a.label("L_pl_%d" % e)
        a("s_cmp_gt_u32 s41, %d" % e)
        a("s_cbranch_scc1 L_pl_%d" % (e + 1))
        if e >= NB:
            a("s_cmp_gt_u32 s41, %d" % (e - NB))
            a("s_cbranch_scc0 L_pl_%d" % NSLOT)
        issue_loads(a, e, NSLOT)
    a.label("L_pl_%d" % NSLOT)
    stamp(a, 3)
    a("s_cmp_ge_u32 s41, %d" % FIRST)
    a("s_cbranch_scc1 L_it_%d" % FIRST)
    for e in range(NSLOT):
        a.label("L_it_%d" % e)
        a("s_cmp_gt_u32 s41, %d" % e)
        a("s_cbranch_scc1 L_it_%d" % (e + 1))
        iteration(a, e, NSLOT)
    a.label("L_it_%d" % NSLOT)
    stamp(a, 6)
    xq(a, "v_add_f32", [V_L], [V_Y])
    a("""
    s_mul_i32 s43, s39, %d
    v_bfe_u32 v22, v1, 2, 2
    v_and_b32 v23, 3, v1
    v_mul_u32_u24 v32, 152, v22
    v_mul_u32_u24 v33, 36, v18
    v_add3_u32 v32, v32, v33, v23
    v_lshl_add_u32 v32, v32, 2, s43
    s_lshl_b32 s44, s39, 3
    s_add_u32 s44, s44, %d
    v_lshl_add_u32 v33, v22, 6, s44
    """ % (LDS_WAVE, LDS_ML))
    for r in range(4):
        a("ds_write2_b32 v32, v%d, v%d offset0:%d offset1:%d" % (V_ACC + r, V_ACC + 4 + r, 8 * r, 8 * r + 4))
    a("ds_write_b64 v33, v[20:21]")
    a("""
    s_lshr_b32 s46, s39, 1
    s_and_b32 s47, s39, 1
    s_mul_i32 s43, s46, 608
    s_mul_i32 s44, s47, 288
    s_add_u32 s43, s43, s44
    v_bfe_u32 v34, v1, 3, 1
    v_and_b32 v35, 7, v1
    v_mul_u32_u24 v34, 144, v34
    v_lshl_add_u32 v34, v35, 4, v34
    v_add_u32 v34, s43, v34
    s_lshl_b32 s43, s46, 6
    s_add_u32 s43, s43, %d
    v_mov_b32 v35, s43
    s_lshl_b32 s43, s2, 11
    s_lshl_b32 s44, s39, 8
    s_add_u32 s43, s43, s44
    v_lshl_add_u32 v36, v1, 4, s43
    s_lshl_b32 s43, s46, 11
    s_lshl_b32 s44, s2, 3
    s_add_u32 s43, s43, s44
    s_add_u32 s43, s43, %d
    v_mov_b32 v37, s43
    s_waitcnt vmcnt(0) lgkmcnt(0)
    s_barrier
    """ % (LDS_ML, ML_BASE))
    stamp(a, 7)
    for q in range(4):
        a("ds_read_b128 v[%d:%d], v35 offset:%d" % (96 + 4 * q, 99 + 4 * q, 16 * q))
    for w in range(8):
        a("ds_read_b128 v[%d:%d], v34 offset:%d" % (64 + 4 * w, 67 + 4 * w, LDS_WAVE * w))
    a("s_waitcnt lgkmcnt(8)")
    m = [96 + 2 * w for w in range(8)]
    l = [97 + 2 * w for w in range(8)]
    a("v_max3_f32 v40, v%d, v%d, v%d" % (m[0], m[1], m[2]))
    a("v_max3_f32 v40, v40, v%d, v%d" % (m[3], m[4]))
    a("v_max3_f32 v40, v40, v%d, v%d" % (m[5], m[6]))
    a("v_max_f32 v40, v40, v%d" % m[7])
    for w in range(8):
        a("v_sub_f32 v%d, v%d, v40" % (m[w], m[w]))
    for w in range(8):
        a("v_exp_f32 v%d, v%d" % (m[w], m[w]))
    a("v_mul_f32 v41, v%d, v%d" % (m[0], l[0]))
    for w in range(1, 8):
        a("v_fmac_f32 v41, v%d, v%d" % (m[w], l[w]))
    a("s_waitcnt lgkmcnt(0)")
    for c in range(4):
        a("v_mul_f32 v%d, v%d, v%d" % (44 + c, m[0], 64 + c))
    for w in range(1, 8):
        for c in range(4):
            a("v_fmac_f32 v%d, v%d, v%d" % (44 + c, m[w], 64 + 4 * w + c))
    a("s_mov_b64 exec, 0xffff")
    a("global_store_dwordx4 v36, v[44:47], s[18:19] sc1")
    a("s_mov_b64 exec, 1")
    a("global_store_dwordx2 v37, v[40:41], s[18:19] sc1")
    a("s_mov_b64 exec, -1")
    a("""
    s_mov_b32 s68, s18
    s_mov_b32 s69, s19
    s_add_u32 s43, s76, s75
    s_lshl_b32 s70, s43, 11
    s_mov_b32 s71, 0x00020000
    s_mov_b32 s80, s18
    s_mov_b32 s81, s19
    s_lshl_b32 s44, s46, 8
    s_add_u32 s43, s43, s44
    s_lshl_b32 s43, s43, 3
    s_add_u32 s82, s43, %d
    s_mov_b32 s83, 0x00020000
    v_and_b32 v38, 15, v1
    v_mul_u32_u24 v39, %d, v18
    v_add_u32 v39, s76, v39
    s_lshl_b32 s43, s46, 11
    s_add_u32 s43, s43, %d
    v_lshl_add_u32 v42, v39, 3, s43
    v_lshlrev_b32 v39, 11, v39
    v_lshl_add_u32 v39, v38, 4, v39
    s_lshl_b32 s44, s39, 8
    v_add_u32 v39, s44, v39
    s_lshl_b32 s43, s67, 10
    s_lshl_b32 s44, s39, 7
    s_add_u32 s43, s43, s44
    v_lshl_add_u32 v43, v38, 3, s43
    s_lshl_b32 s43, s67, 5
    v_mov_b32 v2, s43
    v_mov_b32 v3, 1
    v_mov_b32 v5, 0
    s_waitcnt vmcnt(0)
    """ % (ML_BASE, RPS, ML_BASE))
    stamp(a, 8)
    a("s_barrier")
    a("s_cmp_lg_u32 s39, 0")
    a("s_cbranch_scc1 L_noat")
    a("s_mov_b64 exec, 1")
    a("global_atomic_add v4, v2, v3, s[16:17] sc0")
    a("s_waitcnt vmcnt(0)")
    a("ds_write_b32 v5, v4")
    a("s_mov_b64 exec, -1")
    a("s_waitcnt lgkmcnt(0)")
    a.label("L_noat")
    a("s_barrier")
    a("ds_read_b32 v4, v5")
    a("s_sub_u32 s44, s75, 1")
    a("s_waitcnt lgkmcnt(0)")
    a("v_readfirstlane_b32 s43, v4")
    stamp(a, 9)
    a("s_cmp_lg_u32 s43, s44")
    a("s_cbranch_scc1 L_fin")
    O = [64 + 4 * k for k in range(RPS)]
    MLR = 64 + 4 * RPS
    for q in range(RPS // 2):
        a("buffer_load_dwordx4 v[%d:%d], v42, s[80:83], 0 offen offset:%d sc1" % (MLR + 4 * q, MLR + 3 + 4 * q, 16 * q))
    for k in range(RPS):
        if k and k % 2 == 0:
            a("v_add_u32 v39, 0x1000, v39")
        a("buffer_load_dwordx4 v[%d:%d], v39, s[68:71], 0 offen offset:%d sc1" % (O[k], O[k] + 3, 2048 * (k & 1)))
    a("v_mov_b32 v9, 0xff7fffff")
    a("s_waitcnt vmcnt(%d)" % RPS)
    m = [MLR + 2 * k for k in range(RPS)]
    l = [MLR + 1 + 2 * k for k in range(RPS)]
    for k in range(RPS):
        dst = "vcc" if k % 2 == 0 else "s[46:47]"
        a("v_cmp_eq_f32_e64 %s, 0, v%d" % (dst, l[k]))
        if k % 2 == 1:
            a("v_cndmask_b32_e64 v%d, v%d, v9, vcc" % (m[k - 1], m[k - 1]))
            a("v_cndmask_b32_e64 v%d, v%d, v9, s[46:47]" % (m[k], m[k]))
    a("v_max3_f32 v8, v%d, v%d, v%d" % (m[0], m[1], m[2]))
    rest = m[3:]
    while len(rest) >= 2:
        a("v_max3_f32 v8, v8, v%d, v%d" % (rest[0], rest[1]))
        rest = rest[2:]
    if rest:
        a("v_max_f32 v8, v8, v%d" % rest[0])
    xq(a, "v_max_f32", [8], [9])
    for k in range(RPS):
        a("v_sub_f32 v%d, v%d, v8" % (m[k], m[k]))
    for k in range(RPS):
        a("v_exp_f32 v%d, v%d" % (m[k], m[k]))
    a("v_mul_f32 v14, v%d, v%d" % (m[0], l[0]))
    for k in range(1, RPS):
        a("v_fmac_f32 v14, v%d, v%d" % (m[k], l[k]))
    a("s_waitcnt vmcnt(0)")
    for c in range(4):
        a("v_mul_f32 v%d, v%d, v%d" % (10 + c, m[0], O[0] + c))
    for k in range(1, RPS):
        for c in range(4):
            a("v_fmac_f32 v%d, v%d, v%d" % (10 + c, m[k], O[k] + c))
    xq(a, "v_add_f32", [10, 11, 12, 13, 14], [20, 21, 22, 23, 24])
    a("v_rcp_f32 v14, v14")
    for c in range(4):
        a("v_mul_f32 v%d, v%d, v14" % (10 + c, 10 + c))
    a("v_cvt_pk_bf16_f32 v16, v10, v11")
    a("v_cvt_pk_bf16_f32 v17, v12, v13")
    a("s_mov_b64 exec, 0xffff")
    a("global_store_dwordx2 v43, v[16:17], s[14:15]")
    if OPT["diag"]:
        a("s_waitcnt vmcnt(0)")
    a.label("L_fin")
    stamp(a, 10)
    dump_stamps(a, 11)
    a.label("L_end")
    a("s_endpgm")


def kd(name, vgpr, sgpr):
    acc = (vgpr + 3) // 4 * 4
    return """.p2align 6
.amdhsa_kernel %s
  .amdhsa_next_free_vgpr %d
  .amdhsa_next_free_sgpr %d
  .amdhsa_accum_offset %d
  .amdhsa_group_segment_fixed_size 0
  .amdhsa_kernarg_size 64
  .amdhsa_user_sgpr_count 2
  .amdhsa_user_sgpr_kernarg_segment_ptr 1
  .amdhsa_system_sgpr_workgroup_id_x 1
.end_amdhsa_kernel
""" % (name, vgpr, sgpr, acc)


def main():
    for arg in sys.argv[2:]:
        k, _, v = arg.partition("=")
        if k == "ld":
            OPT["ld"] = (" " + v.replace("+", " ")) if v else ""
        elif k == "nh":
            OPT["nh"] = v
        else:
            OPT[k] = int(v) if v else 1
    out = list(HEADER)
    out.append("; @launch grid=(256,1,1) block=(512,1,1) lds=%d" % LDS_TOTAL)
    out.append('.amdgcn_target "amdgcn-amd-amdhsa--gfx950"')
    out.append(".text")
    a = Asm()
    gen(a)
    nm = NAME + "_kernel"
    out.append(".globl %s\n.p2align 8\n.type %s,@function\n%s:" % (nm, nm, nm))
    out.append(a.text())
    out.append('.section .rodata,"a"')
    out.append(kd(nm, BUF0 + 32 * NB, 100))
    open(sys.argv[1], "w").write("\n".join(out))


if __name__ == "__main__":
    main()
```

```python
import sys
import struct
from asmlib import Asm

NAME = "standalone__paged_block_table_kv_pagedattention__decode"
HEADER = open("cdna_kernels/%s.s.ref" % NAME).read().split("\n")[:9]

KV_BYTES = 2052 * 32768
NB = 5
BUF0 = 64
SCALE = 1.4426950408889634 * (128 ** -0.5)
ML_BASE = 512 << 10
LDS_WAVE = 2432
LDS_ML = 8 * LDS_WAVE
LDS_TOTAL = LDS_ML + 256
RPS = 10

OPT = dict(diag=0, ld=" nt", nh="32,32,32,32,32,32,32,32")

S_BT = 28
S_S, S_W, S_I, S_E0, S_LIM0 = 38, 39, 40, 41, 42
S_STR = 45
S_MASK = 46
S_ST = 54
S_CL, S_H = 66, 67
S_N, S_B = 75, 76
V_M0, V_M1 = 10, 11
V_Q = 12
V_C, V_NINF, V_QUAD = 16, 17, 18
V_AL = 19
V_M, V_L = 20, 21
V_X, V_Y = 22, 23
V_ACC = 24
V_D = 32
V_T = 48
V_B = 52


def f32(x):
    return "0x%08x" % struct.unpack("<I", struct.pack("<f", x))[0]


def kreg(b, g):
    r = BUF0 + 32 * b + 4 * g
    return "v[%d:%d]" % (r, r + 3)


def vreg(b, g):
    r = BUF0 + 32 * b + 16 + 4 * g
    return "v[%d:%d]" % (r, r + 3)


def vreg_half(b, g, u):
    r = BUF0 + 32 * b + 16 + 4 * g + 2 * u
    return "v[%d:%d]" % (r, r + 1)


def stamp(a, k):
    if OPT["diag"]:
        a("s_memrealtime s[94:95]")
        a("s_waitcnt lgkmcnt(0)")
        a("s_mov_b32 s%d, s94" % (S_ST + k))


def dump_stamps(a, n):
    if not OPT["diag"]:
        return
    a("s_mov_b64 exec, 1")
    a("s_lshl_b32 s43, s2, 3")
    a("s_add_u32 s43, s43, s%d" % S_W)
    a("s_lshl_b32 s43, s43, 6")
    a("s_add_u32 s43, s43, 0x4000000")
    a("v_mov_b32 v2, s43")
    for k in range(n):
        a("v_mov_b32 v3, s%d" % (S_ST + k))
        a("global_store_dword v2, v3, s[18:19] offset:%d" % (4 * k))
    a("s_getreg_b32 s43, hwreg(HW_REG_XCC_ID)")
    a("v_mov_b32 v3, s43")
    a("global_store_dword v2, v3, s[18:19] offset:56")
    a("v_mov_b32 v3, s%d" % S_H)
    a("global_store_dword v2, v3, s[18:19] offset:60")


def issue_loads(a, e, NSLOT):
    j = NSLOT - 1 - e
    b = e % NB
    for g in range(4):
        a("buffer_load_dwordx4 %s, v%d, s[20:23], s%d offen%s" % (kreg(b, g), 2 + g, S_BT + j, OPT["ld"]))
    for g in range(4):
        a("buffer_load_dwordx4 %s, v%d, s[24:27], s%d offen%s" % (vreg(b, g), 6 + g, S_BT + j, OPT["ld"]))


def xq(a, op, xs, ys):
    for sw in ("v_permlane32_swap_b32", "v_permlane16_swap_b32"):
        for x, y in zip(xs, ys):
            a("v_mov_b32 v%d, v%d" % (y, x))
        for x, y in zip(xs, ys):
            a("%s v%d, v%d" % (sw, x, y))
        for x, y in zip(xs, ys):
            a("%s v%d, v%d, v%d" % (op, x, x, y))


def iteration(a, e, NSLOT):
    j = NSLOT - 1 - e
    b = e % NB
    younger = 8 * (min(e + NB - 1, NSLOT - 1) - e)
    a("s_waitcnt vmcnt(%d)" % (younger + 4))
    if e == NSLOT - 4:
        stamp(a, 4)
    if e == NSLOT - 1:
        stamp(a, 5)
    for g in range(4):
        a("v_mfma_f32_16x16x32_bf16 v[%d:%d], %s, v[%d:%d], 0" % (V_D + 4 * g, V_D + 4 * g + 3, kreg(b, g), V_Q, V_Q + 3))
    a("s_mul_i32 s43, s%d, %d" % (S_STR, 16 * j))
    a("s_sub_i32 s43, s%d, s43" % S_LIM0)
    for g in range(4):
        d = V_D + 4 * g
        t = V_T + g
        a("v_mul_f32_dpp v%d, v%d, v%d quad_perm:[0,0,0,0] row_mask:0xf bank_mask:0xf" % (t, d, V_C))
        for r in range(1, 4):
            a("v_fmac_f32_dpp v%d, v%d, v%d quad_perm:[%d,%d,%d,%d] row_mask:0xf bank_mask:0xf" % (t, d + r, V_C, r, r, r, r))
    a("s_cmp_ge_i32 s43, 16")
    a("s_cbranch_scc1 L_nomask_%d" % e)
    for g in range(4):
        a("s_sub_i32 s44, s43, %d" % (4 * g))
        a("v_cmp_gt_i32_e64 s[%d:%d], s44, v%d" % (S_MASK + 2 * g, S_MASK + 1 + 2 * g, V_QUAD))
    for g in range(4):
        a("v_cndmask_b32_e64 v%d, v%d, v%d, s[%d:%d]" % (V_T + g, V_NINF, V_T + g, S_MASK + 2 * g, S_MASK + 1 + 2 * g))
    a.label("L_nomask_%d" % e)
    a("v_max3_f32 v%d, v%d, v%d, v%d" % (V_X, V_T, V_T + 1, V_T + 2))
    a("v_max3_f32 v%d, v%d, v%d, v%d" % (V_X, V_X, V_T + 3, V_M))
    xq(a, "v_max_f32", [V_X], [V_Y])
    a("v_sub_f32 v%d, v%d, v%d" % (V_AL, V_M, V_X))
    for g in range(4):
        a("v_sub_f32 v%d, v%d, v%d" % (V_T + g, V_T + g, V_X))
    a("v_exp_f32 v%d, v%d" % (V_AL, V_AL))
    for g in range(4):
        a("v_exp_f32 v%d, v%d" % (V_T + g, V_T + g))
    a("v_mov_b32 v%d, v%d" % (V_M, V_X))
    for r in range(8):
        a("v_mul_f32 v%d, v%d, v%d" % (V_ACC + r, V_ACC + r, V_AL))
    for g in range(4):
        a("v_cvt_pk_bf16_f32 v%d, v%d, v%d" % (V_D + g, V_T + g, V_T + g))
    a("v_fma_f32 v%d, v%d, v%d, v%d" % (V_L, V_L, V_AL, V_T))
    a("v_add_f32 v%d, v%d, v%d" % (V_X, V_T + 1, V_T + 2))
    for g in range(4):
        a("v_and_b32 v%d, v%d, v%d" % (V_B + 2 * g, V_D + g, V_M0))
        a("v_and_b32 v%d, v%d, v%d" % (V_B + 2 * g + 1, V_D + g, V_M1))
    a("v_add_f32 v%d, v%d, v%d" % (V_L, V_L, V_T + 3))
    a("v_add_f32 v%d, v%d, v%d" % (V_L, V_L, V_X))
    a("s_waitcnt vmcnt(%d)" % younger)
    for g in range(4):
        for u in range(2):
            acc = "v[%d:%d]" % (V_ACC + 4 * u, V_ACC + 4 * u + 3)
            a("v_mfma_f32_16x16x16_bf16 %s, %s, v[%d:%d], %s" % (acc, vreg_half(b, g, u), V_B + 2 * g, V_B + 2 * g + 1, acc))
    if e + NB <= NSLOT - 1:
        issue_loads(a, e + NB, NSLOT)


def gen(a):
    nh = [int(x) for x in OPT["nh"].split(",")]
    assert sum(nh) == 256 and max(nh) <= 40
    B = [sum(nh[:h]) for h in range(8)]
    NSLOT = -(-2048 // (8 * min(nh)))
    assert NSLOT <= 10
    FIRST = NSLOT - 5
    a("s_cmp_ge_u32 s2, 256")
    a("s_cbranch_scc1 L_end")
    stamp(a, 0)
    a("s_load_dwordx16 s[4:19], s[0:1], 0")
    a("v_and_b32 v1, 63, v0")
    a("v_lshrrev_b32 v22, 6, v0")
    a("s_mov_b32 s%d, 0" % S_H)
    a("v_readfirstlane_b32 s39, v22")
    a("s_mov_b32 s%d, 0" % S_B)
    a("s_mov_b32 s%d, %d" % (S_N, nh[0]))
    for h in range(1, 8):
        a("s_cmp_ge_u32 s2, %d" % B[h])
        a("s_cselect_b32 s%d, %d, s%d" % (S_H, h, S_H))
        a("s_cselect_b32 s%d, %d, s%d" % (S_B, B[h], S_B))
        a("s_cselect_b32 s%d, %d, s%d" % (S_N, nh[h], S_N))
    a("""
    s_sub_u32 s38, s2, s76
    s_mul_i32 s40, s39, s75
    s_add_u32 s40, s40, s38
    s_lshl_b32 s45, s75, 3
    s_lshl_b32 s44, s67, 8
    v_lshrrev_b32 v18, 4, v1
    v_bfe_u32 v22, v1, 2, 2
    v_and_b32 v23, 3, v1
    v_lshlrev_b32 v24, 4, v23
    v_lshl_add_u32 v24, v18, 6, v24
    v_lshl_add_u32 v2, v22, 11, v24
    v_add_u32 v2, s44, v2
    v_add_u32 v3, 0x2000, v2
    v_add_u32 v4, 0x4000, v2
    v_add_u32 v5, 0x6000, v2
    v_and_b32 v25, 15, v1
    v_lshlrev_b32 v25, 4, v25
    v_lshl_add_u32 v6, v18, 11, v25
    v_add_u32 v6, s44, v6
    v_add_u32 v7, 0x2000, v6
    v_add_u32 v8, 0x4000, v6
    v_add_u32 v9, 0x6000, v6
    s_lshl_b32 s44, s67, 10
    v_lshl_add_u32 v26, v22, 8, v24
    v_add_u32 v26, s44, v26
    s_mov_b32 s43, s40
    """)
    for j in range(NSLOT):
        a("s_min_u32 s44, s43, 0x7ff")
        a("s_lshl_b32 s%d, s44, 2" % (80 + j))
        if j < NSLOT - 1:
            a("s_add_u32 s43, s43, s45")
    a("s_waitcnt lgkmcnt(0)")
    stamp(a, 1)
    a("s_load_dword s%d, s[12:13], 0" % S_CL)
    for j in range(NSLOT):
        a("s_load_dword s%d, s[10:11], s%d" % (S_BT + j, 80 + j))
    if OPT.get("tlb"):
        a("s_cmp_ge_u32 s39, %d" % OPT["tlb"])
        a("s_cbranch_scc1 L_notlb")
        a("v_lshlrev_b32 v60, 20, v1")
        a("global_load_dword v61, v60, s[6:7]")
        a("global_load_dword v62, v60, s[8:9]")
        a.label("L_notlb")
    a("global_load_dwordx4 v[12:15], v26, s[4:5]")
    a("""
    s_mov_b32 s20, s6
    s_mov_b32 s21, s7
    s_mov_b32 s22, %d
    s_mov_b32 s23, 0x00020000
    s_mov_b32 s24, s8
    s_mov_b32 s25, s9
    s_mov_b32 s26, %d
    s_mov_b32 s27, 0x00020000
    v_and_b32 v24, 1, v23
    v_lshlrev_b32 v24, 4, v24
    v_mov_b32 v25, 0xffff
    v_lshlrev_b32 v25, v24, v25
    v_cmp_gt_u32 vcc, 2, v23
    v_mov_b32 v17, 0xff800000
    v_mov_b32 v20, 0xff7fffff
    v_mov_b32 v21, 0
    v_cndmask_b32 v10, 0, v25, vcc
    v_cndmask_b32_e64 v11, v25, 0, vcc
    """ % (KV_BYTES, KV_BYTES))
    for r in range(8):
        a("v_mov_b32 v%d, 0" % (V_ACC + r))
    a("s_waitcnt lgkmcnt(0)")
    stamp(a, 2)
    a("""
    s_mov_b32 s44, %s
    s_cmp_lt_i32 s66, 1
    s_cselect_b32 s44, 0, s44
    s_cselect_b32 s66, 0x8000, s66
    s_min_i32 s66, s66, 0x8000
    v_mov_b32 v16, s44
    s_lshl_b32 s43, s40, 4
    s_sub_i32 s42, s66, s43
    s_lshl_b32 s77, s45, 4
    s_mov_b32 s43, s42
    s_mov_b32 s41, %d
    """ % (f32(SCALE), NSLOT))
    for j in range(NSLOT):
        a("s_cmp_gt_i32 s43, 0")
        a("s_subb_u32 s41, s41, 0")
        if j < NSLOT - 1:
            a("s_sub_i32 s43, s43, s77")
        a("s_lshl_b32 s%d, s%d, 15" % (S_BT + j, S_BT + j))
    a("s_cmp_ge_u32 s41, %d" % FIRST)
    a("s_cbranch_scc1 L_pl_%d" % FIRST)
    for e in range(NSLOT):
        a.label("L_pl_%d" % e)
        a("s_cmp_gt_u32 s41, %d" % e)
        a("s_cbranch_scc1 L_pl_%d" % (e + 1))
        if e >= NB:
            a("s_cmp_gt_u32 s41, %d" % (e - NB))
            a("s_cbranch_scc0 L_pl_%d" % NSLOT)
        issue_loads(a, e, NSLOT)
    a.label("L_pl_%d" % NSLOT)
    stamp(a, 3)
    a("s_cmp_ge_u32 s41, %d" % FIRST)
    a("s_cbranch_scc1 L_it_%d" % FIRST)
    for e in range(NSLOT):
        a.label("L_it_%d" % e)
        a("s_cmp_gt_u32 s41, %d" % e)
        a("s_cbranch_scc1 L_it_%d" % (e + 1))
        iteration(a, e, NSLOT)
    a.label("L_it_%d" % NSLOT)
    stamp(a, 6)
    xq(a, "v_add_f32", [V_L], [V_Y])
    a("""
    s_mul_i32 s43, s39, %d
    v_bfe_u32 v22, v1, 2, 2
    v_and_b32 v23, 3, v1
    v_mul_u32_u24 v32, 152, v22
    v_mul_u32_u24 v33, 36, v18
    v_add3_u32 v32, v32, v33, v23
    v_lshl_add_u32 v32, v32, 2, s43
    s_lshl_b32 s44, s39, 3
    s_add_u32 s44, s44, %d
    v_lshl_add_u32 v33, v22, 6, s44
    """ % (LDS_WAVE, LDS_ML))
    for r in range(4):
        a("ds_write2_b32 v32, v%d, v%d offset0:%d offset1:%d" % (V_ACC + r, V_ACC + 4 + r, 8 * r, 8 * r + 4))
    a("ds_write_b64 v33, v[20:21]")
    a("""
    s_lshr_b32 s46, s39, 1
    s_and_b32 s47, s39, 1
    s_mul_i32 s43, s46, 608
    s_mul_i32 s44, s47, 288
    s_add_u32 s43, s43, s44
    v_bfe_u32 v34, v1, 3, 1
    v_and_b32 v35, 7, v1
    v_mul_u32_u24 v34, 144, v34
    v_lshl_add_u32 v34, v35, 4, v34
    v_add_u32 v34, s43, v34
    s_lshl_b32 s43, s46, 6
    s_add_u32 s43, s43, %d
    v_mov_b32 v35, s43
    s_lshl_b32 s43, s2, 10
    s_lshl_b32 s44, s39, 7
    s_add_u32 s43, s43, s44
    v_lshl_add_u32 v36, v1, 3, s43
    s_lshl_b32 s43, s46, 3
    s_add_u32 s43, s43, s67
    s_lshl_b32 s43, s43, 9
    s_add_u32 s78, s43, %d
    s_lshl_b32 s44, s38, 3
    s_add_u32 s43, s78, s44
    v_mov_b32 v37, s43
    s_waitcnt vmcnt(0) lgkmcnt(0)
    s_barrier
    """ % (LDS_ML, ML_BASE))
    stamp(a, 7)
    for q in range(4):
        a("ds_read_b128 v[%d:%d], v35 offset:%d" % (96 + 4 * q, 99 + 4 * q, 16 * q))
    for w in range(8):
        a("ds_read_b128 v[%d:%d], v34 offset:%d" % (64 + 4 * w, 67 + 4 * w, LDS_WAVE * w))
    a("s_waitcnt lgkmcnt(8)")
    m = [96 + 2 * w for w in range(8)]
    l = [97 + 2 * w for w in range(8)]
    a("v_max3_f32 v40, v%d, v%d, v%d" % (m[0], m[1], m[2]))
    a("v_max3_f32 v40, v40, v%d, v%d" % (m[3], m[4]))
    a("v_max3_f32 v40, v40, v%d, v%d" % (m[5], m[6]))
    a("v_max_f32 v40, v40, v%d" % m[7])
    for w in range(8):
        a("v_sub_f32 v%d, v%d, v40" % (m[w], m[w]))
    for w in range(8):
        a("v_exp_f32 v%d, v%d" % (m[w], m[w]))
    a("v_mul_f32 v41, v%d, v%d" % (m[0], l[0]))
    for w in range(1, 8):
        a("v_fmac_f32 v41, v%d, v%d" % (m[w], l[w]))
    a("s_waitcnt lgkmcnt(0)")
    for c in range(4):
        a("v_mul_f32 v%d, v%d, v%d" % (44 + c, m[0], 64 + c))
    for w in range(1, 8):
        for c in range(4):
            a("v_fmac_f32 v%d, v%d, v%d" % (44 + c, m[w], 64 + 4 * w + c))
    a("v_cvt_pk_bf16_f32 v44, v44, v45")
    a("v_cvt_pk_bf16_f32 v45, v46, v47")
    a("s_mov_b64 exec, 0xffff")
    a("global_store_dwordx2 v36, v[44:45], s[18:19] sc1")
    a("s_mov_b64 exec, 1")
    a("global_store_dwordx2 v37, v[40:41], s[18:19] sc1")
    a("s_mov_b64 exec, -1")
    a("""
    s_mov_b32 s68, s18
    s_mov_b32 s69, s19
    s_add_u32 s43, s76, s75
    s_lshl_b32 s70, s43, 10
    s_mov_b32 s71, 0x00020000
    s_mov_b32 s80, s18
    s_mov_b32 s81, s19
    s_lshl_b32 s43, s75, 3
    s_add_u32 s82, s78, s43
    s_mov_b32 s83, 0x00020000
    v_lshl_add_u32 v42, v1, 3, s78
    v_lshrrev_b32 v38, 3, v1
    v_and_b32 v48, 7, v1
    s_lshl_b32 s43, s76, 10
    s_lshl_b32 s44, s39, 7
    s_add_u32 s43, s43, s44
    v_lshlrev_b32 v39, 10, v38
    v_lshl_add_u32 v39, v48, 4, v39
    v_add_u32 v39, s43, v39
    v_lshlrev_b32 v38, 2, v38
    s_lshl_b32 s43, s67, 10
    s_add_u32 s43, s43, s44
    v_lshlrev_b32 v43, 4, v48
    v_lshrrev_b32 v49, 4, v1
    v_lshl_add_u32 v43, v49, 2, v43
    v_add_u32 v43, s43, v43
    s_movk_i32 s72, 0x2000
    s_movk_i32 s73, 0x4000
    s_movk_i32 s74, 0x6000
    s_mov_b32 s77, 0x8000
    s_lshl_b32 s43, s67, 5
    v_mov_b32 v2, s43
    v_mov_b32 v3, 1
    v_mov_b32 v5, 0
    s_waitcnt vmcnt(0)
    """)
    stamp(a, 8)
    a("s_barrier")
    a("s_cmp_lg_u32 s39, 0")
    a("s_cbranch_scc1 L_noat")
    a("s_mov_b64 exec, 1")
    a("global_atomic_add v4, v2, v3, s[16:17] sc0")
    a("s_waitcnt vmcnt(0)")
    a("ds_write_b32 v5, v4")
    a("s_mov_b64 exec, -1")
    a("s_waitcnt lgkmcnt(0)")
    a.label("L_noat")
    a("s_barrier")
    a("ds_read_b32 v4, v5")
    a("s_sub_u32 s44, s75, 1")
    a("s_waitcnt lgkmcnt(0)")
    a("v_readfirstlane_b32 s43, v4")
    stamp(a, 9)
    a("s_cmp_lg_u32 s43, s44")
    a("s_cbranch_scc1 L_fin")
    KR = 5
    O = [64 + 4 * k for k in range(KR)]
    a("buffer_load_dwordx2 v[8:9], v42, s[80:83], 0 offen sc1")
    for k in range(KR):
        so = ["0", "s72", "s73", "s74", "s77"][k]
        a("buffer_load_dwordx4 v[%d:%d], v39, s[68:71], %s offen sc1" % (O[k], O[k] + 3, so))
    a("v_mov_b32 v10, 0xff7fffff")
    a("s_waitcnt vmcnt(%d)" % KR)
    if OPT.get("fst"):
        stamp(a, 4)
    a("v_cmp_eq_f32 vcc, 0, v9")
    a("v_cndmask_b32 v8, v8, v10, vcc")
    a("v_mov_b32 v10, v8")
    for rot in (8, 4, 2, 1):
        a("v_max_f32_dpp v10, v10, v10 row_ror:%d row_mask:0xf bank_mask:0xf" % rot)
    xq(a, "v_max_f32", [10], [11])
    a("v_sub_f32 v8, v8, v10")
    a("v_exp_f32 v8, v8")
    a("v_mul_f32 v9, v8, v9")
    for k in range(KR):
        a("ds_bpermute_b32 v%d, v38, v8 offset:%d" % (12 + k, 32 * k))
    for rot in (8, 4, 2, 1):
        a("v_add_f32_dpp v9, v9, v9 row_ror:%d row_mask:0xf bank_mask:0xf" % rot)
    xq(a, "v_add_f32", [9], [11])
    a("v_rcp_f32 v9, v9")
    a("s_mov_b32 s43, 0xffff0000")
    a("s_waitcnt vmcnt(0) lgkmcnt(0)")
    if OPT.get("fst"):
        stamp(a, 5)
    ACC = [20 + i for i in range(8)]
    for k in range(KR):
        for q in range(4):
            a("v_lshlrev_b32 v%d, 16, v%d" % (30 + 2 * q, O[k] + q))
            a("v_and_b32 v%d, s43, v%d" % (31 + 2 * q, O[k] + q))
        for i in range(8):
            if k == 0:
                a("v_mul_f32 v%d, v%d, v%d" % (ACC[i], 12 + k, 30 + i))
            else:
                a("v_fmac_f32 v%d, v%d, v%d" % (ACC[i], 12 + k, 30 + i))
    for i in range(4):
        a("v_permlane32_swap_b32 v%d, v%d" % (ACC[i], ACC[i + 4]))
    for i in range(4):
        a("v_add_f32 v%d, v%d, v%d" % (ACC[i], ACC[i], ACC[i + 4]))
    for i in range(2):
        a("v_permlane16_swap_b32 v%d, v%d" % (ACC[i], ACC[i + 2]))
    for i in range(2):
        a("v_add_f32 v%d, v%d, v%d" % (ACC[i], ACC[i], ACC[i + 2]))
    for i in range(2):
        a("v_add_f32_dpp v%d, v%d, v%d row_ror:8 row_mask:0xf bank_mask:0xf" % (ACC[i], ACC[i], ACC[i]))
    for i in range(2):
        a("v_mul_f32 v%d, v%d, v9" % (ACC[i], ACC[i]))
    a("v_cvt_pk_bf16_f32 v16, v%d, v%d" % (ACC[0], ACC[1]))
    a("s_mov_b32 exec_lo, 0x00ff00ff")
    a("s_mov_b32 exec_hi, 0x00ff00ff")
    a("global_store_dword v43, v16, s[14:15]")
    if OPT.get("fst"):
        stamp(a, 3)
    if OPT["diag"]:
        a("s_waitcnt vmcnt(0)")
    a.label("L_fin")
    stamp(a, 10)
    dump_stamps(a, 11)
    a.label("L_end")
    a("s_endpgm")


def kd(name, vgpr, sgpr):
    acc = (vgpr + 3) // 4 * 4
    return """.p2align 6
.amdhsa_kernel %s
  .amdhsa_next_free_vgpr %d
  .amdhsa_next_free_sgpr %d
  .amdhsa_accum_offset %d
  .amdhsa_group_segment_fixed_size 0
  .amdhsa_kernarg_size 64
  .amdhsa_user_sgpr_count 2
  .amdhsa_user_sgpr_kernarg_segment_ptr 1
  .amdhsa_system_sgpr_workgroup_id_x 1
.end_amdhsa_kernel
""" % (name, vgpr, sgpr, acc)


def main():
    for arg in sys.argv[2:]:
        k, _, v = arg.partition("=")
        if k == "ld":
            OPT["ld"] = (" " + v.replace("+", " ")) if v else ""
        elif k == "nh":
            OPT["nh"] = v
        elif k == "nb":
            global NB
            NB = int(v)
        else:
            OPT[k] = int(v) if v else 1
    out = list(HEADER)
    out.append("; @launch grid=(256,1,1) block=(512,1,1) lds=%d" % LDS_TOTAL)
    out.append('.amdgcn_target "amdgcn-amd-amdhsa--gfx950"')
    out.append(".text")
    a = Asm()
    gen(a)
    nm = NAME + "_kernel"
    out.append(".globl %s\n.p2align 8\n.type %s,@function\n%s:" % (nm, nm, nm))
    out.append(a.text())
    out.append('.section .rodata,"a"')
    out.append(kd(nm, max(BUF0 + 32 * NB, OPT.get("minv", 136)), 100))
    open(sys.argv[1], "w").write("\n".join(out))


if __name__ == "__main__":
    main()
```

```python
import sys
import struct
from asmlib import Asm

NAME = "standalone__paged_block_table_kv_pagedattention__decode"
HEADER = open("cdna_kernels/%s.s.ref" % NAME).read().split("\n")[:9]

KV_BYTES = 2052 * 32768
NB = 5
BUF0 = 64
SCALE = 1.4426950408889634 * (128 ** -0.5)
ML_BASE = 512 << 10
LDS_WAVE = 2432
LDS_ML = 8 * LDS_WAVE
LDS_TOTAL = LDS_ML + 256
RPS = 10

OPT = dict(diag=0, ld=" nt", nh="32,32,32,32,32,32,32,32")

S_BT = 28
S_S, S_W, S_I, S_E0, S_LIM0 = 38, 39, 40, 41, 42
S_STR = 45
S_MASK = 46
S_ST = 54
S_CL, S_H = 66, 67
S_N, S_B = 75, 76
V_M0, V_M1 = 10, 11
V_Q = 12
V_C, V_NINF, V_QUAD = 16, 17, 18
V_AL = 19
V_M, V_L = 20, 21
V_X, V_Y = 22, 23
V_ACC = 24
V_D = 32
V_T = 48
V_B = 52


def f32(x):
    return "0x%08x" % struct.unpack("<I", struct.pack("<f", x))[0]


def kreg(b, g):
    r = BUF0 + 32 * b + 4 * g
    return "v[%d:%d]" % (r, r + 3)


def vreg(b, g):
    r = BUF0 + 32 * b + 16 + 4 * g
    return "v[%d:%d]" % (r, r + 3)


def vreg_half(b, g, u):
    r = BUF0 + 32 * b + 16 + 4 * g + 2 * u
    return "v[%d:%d]" % (r, r + 1)


def stamp(a, k):
    if OPT["diag"]:
        a("s_memrealtime s[94:95]")
        a("s_waitcnt lgkmcnt(0)")
        a("s_mov_b32 s%d, s94" % (S_ST + k))


def dump_stamps(a, n):
    if not OPT["diag"]:
        return
    a("s_mov_b64 exec, 1")
    a("s_lshl_b32 s43, s2, 3")
    a("s_add_u32 s43, s43, s%d" % S_W)
    a("s_lshl_b32 s43, s43, 6")
    a("s_add_u32 s43, s43, 0x4000000")
    a("v_mov_b32 v2, s43")
    for k in range(n):
        a("v_mov_b32 v3, s%d" % (S_ST + k))
        a("global_store_dword v2, v3, s[18:19] offset:%d" % (4 * k))
    a("s_getreg_b32 s43, hwreg(HW_REG_XCC_ID)")
    a("v_mov_b32 v3, s43")
    a("global_store_dword v2, v3, s[18:19] offset:56")
    a("v_mov_b32 v3, s%d" % S_H)
    a("global_store_dword v2, v3, s[18:19] offset:60")


def issue_loads(a, e, NSLOT):
    j = NSLOT - 1 - e
    b = e % NB
    a("s_lshl_b32 s%d, s%d, 15" % (S_BT + j, S_BT + j))
    for g in range(4):
        a("buffer_load_dwordx4 %s, v%d, s[20:23], s%d offen%s" % (kreg(b, g), 2 + g, S_BT + j, OPT["ld"]))
    for g in range(4):
        a("buffer_load_dwordx4 %s, v%d, s[24:27], s%d offen%s" % (vreg(b, g), 6 + g, S_BT + j, OPT["ld"]))


def xq(a, op, xs, ys):
    for sw in ("v_permlane32_swap_b32", "v_permlane16_swap_b32"):
        for x, y in zip(xs, ys):
            a("v_mov_b32 v%d, v%d" % (y, x))
        for x, y in zip(xs, ys):
            a("%s v%d, v%d" % (sw, x, y))
        for x, y in zip(xs, ys):
            a("%s v%d, v%d, v%d" % (op, x, x, y))


def iteration(a, e, NSLOT):
    j = NSLOT - 1 - e
    b = e % NB
    younger = 8 * (min(e + NB - 1, NSLOT - 1) - e)
    a("s_waitcnt vmcnt(%d)" % (younger + 4))
    if e == NSLOT - 4:
        stamp(a, 4)
    if e == NSLOT - 1:
        stamp(a, 5)
    for g in range(4):
        a("v_mfma_f32_16x16x32_bf16 v[%d:%d], %s, v[%d:%d], 0" % (V_D + 4 * g, V_D + 4 * g + 3, kreg(b, g), V_Q, V_Q + 3))
    a("s_mul_i32 s43, s%d, %d" % (S_STR, 16 * j))
    a("s_sub_i32 s43, s%d, s43" % S_LIM0)
    for g in range(4):
        d = V_D + 4 * g
        t = V_T + g
        a("v_mul_f32_dpp v%d, v%d, v%d quad_perm:[0,0,0,0] row_mask:0xf bank_mask:0xf" % (t, d, V_C))
        for r in range(1, 4):
            a("v_fmac_f32_dpp v%d, v%d, v%d quad_perm:[%d,%d,%d,%d] row_mask:0xf bank_mask:0xf" % (t, d + r, V_C, r, r, r, r))
    a("s_cmp_ge_i32 s43, 16")
    a("s_cbranch_scc1 L_nomask_%d" % e)
    for g in range(4):
        a("s_sub_i32 s44, s43, %d" % (4 * g))
        a("v_cmp_gt_i32_e64 s[%d:%d], s44, v%d" % (S_MASK + 2 * g, S_MASK + 1 + 2 * g, V_QUAD))
    for g in range(4):
        a("v_cndmask_b32_e64 v%d, v%d, v%d, s[%d:%d]" % (V_T + g, V_NINF, V_T + g, S_MASK + 2 * g, S_MASK + 1 + 2 * g))
    a.label("L_nomask_%d" % e)
    a("v_max3_f32 v%d, v%d, v%d, v%d" % (V_X, V_T, V_T + 1, V_T + 2))
    a("v_max3_f32 v%d, v%d, v%d, v%d" % (V_X, V_X, V_T + 3, V_M))
    xq(a, "v_max_f32", [V_X], [V_Y])
    a("v_sub_f32 v%d, v%d, v%d" % (V_AL, V_M, V_X))
    for g in range(4):
        a("v_sub_f32 v%d, v%d, v%d" % (V_T + g, V_T + g, V_X))
    a("v_exp_f32 v%d, v%d" % (V_AL, V_AL))
    for g in range(4):
        a("v_exp_f32 v%d, v%d" % (V_T + g, V_T + g))
    a("v_mov_b32 v%d, v%d" % (V_M, V_X))
    for r in range(8):
        a("v_mul_f32 v%d, v%d, v%d" % (V_ACC + r, V_ACC + r, V_AL))
    for g in range(4):
        a("v_cvt_pk_bf16_f32 v%d, v%d, v%d" % (V_D + g, V_T + g, V_T + g))
    a("v_fma_f32 v%d, v%d, v%d, v%d" % (V_L, V_L, V_AL, V_T))
    a("v_add_f32 v%d, v%d, v%d" % (V_X, V_T + 1, V_T + 2))
    for g in range(4):
        a("v_and_b32 v%d, v%d, v%d" % (V_B + 2 * g, V_D + g, V_M0))
        a("v_and_b32 v%d, v%d, v%d" % (V_B + 2 * g + 1, V_D + g, V_M1))
    a("v_add_f32 v%d, v%d, v%d" % (V_L, V_L, V_T + 3))
    a("v_add_f32 v%d, v%d, v%d" % (V_L, V_L, V_X))
    a("s_waitcnt vmcnt(%d)" % younger)
    for g in range(4):
        for u in range(2):
            acc = "v[%d:%d]" % (V_ACC + 4 * u, V_ACC + 4 * u + 3)
            a("v_mfma_f32_16x16x16_bf16 %s, %s, v[%d:%d], %s" % (acc, vreg_half(b, g, u), V_B + 2 * g, V_B + 2 * g + 1, acc))
    if e + NB <= NSLOT - 1:
        issue_loads(a, e + NB, NSLOT)


def gen(a):
    nh = [int(x) for x in OPT["nh"].split(",")]
    assert sum(nh) == 256 and max(nh) <= 40
    B = [sum(nh[:h]) for h in range(8)]
    NSLOT = -(-2048 // (8 * min(nh)))
    assert NSLOT <= 10
    FIRST = NSLOT - 5
    a("s_cmp_ge_u32 s2, 256")
    a("s_cbranch_scc1 L_end")
    stamp(a, 0)
    a("s_load_dwordx16 s[4:19], s[0:1], 0")
    a("v_lshrrev_b32 v22, 6, v0")
    pk = lambda h: h | (B[h] << 3) | (nh[h] << 11)
    mg = lambda h: (1 << 32) // (128 * nh[h]) + 1
    a("s_mov_b32 s43, 0x%x" % pk(0))
    a("v_readfirstlane_b32 s39, v22")
    a("s_mov_b32 s79, 0x%x" % mg(0))
    for h in range(1, 8):
        a("s_cmp_ge_u32 s2, %d" % B[h])
        a("s_cselect_b32 s43, 0x%x, s43" % pk(h))
        if mg(h) != mg(h - 1) or True:
            a("s_cselect_b32 s79, 0x%x, s79" % mg(h))
    a("""
    s_lshr_b32 s75, s43, 11
    s_bfe_u32 s76, s43, 0x80003
    s_and_b32 s67, s43, 7
    s_sub_u32 s38, s2, s76
    s_mul_i32 s40, s39, s75
    s_add_u32 s40, s40, s38
    s_lshl_b32 s45, s75, 3
    s_lshl_b32 s44, s75, 5
    s_lshl_b32 s80, s40, 2
    """)
    prev = 80
    for j in range(1, NSLOT):
        if j == 1:
            a("s_add_u32 s43, s80, s44")
        else:
            a("s_add_u32 s43, s43, s44")
        a("s_min_u32 s%d, s43, 0x1ffc" % (80 + j))
    a("s_waitcnt lgkmcnt(0)")
    stamp(a, 1)
    a("s_load_dword s%d, s[12:13], 0" % S_CL)
    for j in range(NSLOT):
        a("s_load_dword s%d, s[10:11], s%d" % (S_BT + j, 80 + j))
    a("""
    v_and_b32 v1, 63, v0
    s_lshl_b32 s44, s67, 10
    v_lshrrev_b32 v18, 4, v1
    v_bfe_u32 v22, v1, 2, 2
    v_and_b32 v23, 3, v1
    v_lshlrev_b32 v24, 4, v23
    v_lshl_add_u32 v24, v18, 6, v24
    v_lshl_add_u32 v26, v22, 8, v24
    v_add_u32 v26, s44, v26
    global_load_dwordx4 v[12:15], v26, s[4:5]
    s_lshl_b32 s44, s67, 8
    v_lshl_add_u32 v2, v22, 11, v24
    v_add_u32 v2, s44, v2
    v_add_u32 v3, 0x2000, v2
    v_add_u32 v4, 0x4000, v2
    v_add_u32 v5, 0x6000, v2
    v_and_b32 v25, 15, v1
    v_lshlrev_b32 v25, 4, v25
    v_lshl_add_u32 v6, v18, 11, v25
    v_add_u32 v6, s44, v6
    v_add_u32 v7, 0x2000, v6
    v_add_u32 v8, 0x4000, v6
    v_add_u32 v9, 0x6000, v6
    s_mov_b32 s20, s6
    s_mov_b32 s21, s7
    s_mov_b32 s22, %d
    s_mov_b32 s23, 0x00020000
    s_mov_b32 s24, s8
    s_mov_b32 s25, s9
    s_mov_b32 s26, %d
    s_mov_b32 s27, 0x00020000
    v_and_b32 v24, 1, v23
    v_lshlrev_b32 v24, 4, v24
    v_mov_b32 v25, 0xffff
    v_lshlrev_b32 v25, v24, v25
    v_cmp_gt_u32 vcc, 2, v23
    v_mov_b32 v17, 0xff800000
    v_mov_b32 v20, 0xff7fffff
    v_mov_b32 v21, 0
    v_cndmask_b32 v10, 0, v25, vcc
    v_cndmask_b32_e64 v11, v25, 0, vcc
    s_lshl_b32 s77, s75, 7
    s_lshl_b32 s43, s40, 4
    s_sub_u32 s90, s77, s43
    s_sub_u32 s90, s90, 1
    s_mov_b32 s91, %s
    """ % (KV_BYTES, KV_BYTES, f32(SCALE)))
    for r in range(8):
        a("v_mov_b32 v%d, 0" % (V_ACC + r))
    a("s_waitcnt lgkmcnt(0)")
    stamp(a, 2)
    a("""
    s_cmp_lt_i32 s66, 1
    s_cselect_b32 s66, 0x8000, s66
    s_cselect_b32 s91, 0, s91
    s_min_i32 s66, s66, 0x8000
    s_add_i32 s44, s66, s90
    s_max_i32 s44, s44, 0
    s_mul_hi_u32 s44, s44, s79
    s_sub_u32 s41, %d, s44
    """ % NSLOT)
    a("s_cmp_ge_u32 s41, %d" % FIRST)
    a("s_cbranch_scc1 L_pl_%d" % FIRST)
    for e in range(NSLOT):
        a.label("L_pl_%d" % e)
        a("s_cmp_gt_u32 s41, %d" % e)
        a("s_cbranch_scc1 L_pl_%d" % (e + 1))
        if e >= NB:
            a("s_cmp_gt_u32 s41, %d" % (e - NB))
            a("s_cbranch_scc0 L_pl_%d" % NSLOT)
        issue_loads(a, e, NSLOT)
    a.label("L_pl_%d" % NSLOT)
    a("s_lshl_b32 s43, s40, 4")
    a("s_sub_i32 s42, s66, s43")
    a("v_mov_b32 v16, s91")
    stamp(a, 3)
    a("s_cmp_ge_u32 s41, %d" % FIRST)
    a("s_cbranch_scc1 L_it_%d" % FIRST)
    for e in range(NSLOT):
        a.label("L_it_%d" % e)
        a("s_cmp_gt_u32 s41, %d" % e)
        a("s_cbranch_scc1 L_it_%d" % (e + 1))
        iteration(a, e, NSLOT)
    a.label("L_it_%d" % NSLOT)
    stamp(a, 6)
    xq(a, "v_add_f32", [V_L], [V_Y])
    a("""
    s_mul_i32 s43, s39, %d
    v_bfe_u32 v22, v1, 2, 2
    v_and_b32 v23, 3, v1
    v_mul_u32_u24 v32, 152, v22
    v_mul_u32_u24 v33, 36, v18
    v_add3_u32 v32, v32, v33, v23
    v_lshl_add_u32 v32, v32, 2, s43
    s_lshl_b32 s44, s39, 3
    s_add_u32 s44, s44, %d
    v_lshl_add_u32 v33, v22, 6, s44
    """ % (LDS_WAVE, LDS_ML))
    for r in range(4):
        a("ds_write2_b32 v32, v%d, v%d offset0:%d offset1:%d" % (V_ACC + r, V_ACC + 4 + r, 8 * r, 8 * r + 4))
    a("ds_write_b64 v33, v[20:21]")
    a("""
    s_lshr_b32 s46, s39, 1
    s_and_b32 s47, s39, 1
    s_mul_i32 s43, s46, 608
    s_mul_i32 s44, s47, 288
    s_add_u32 s43, s43, s44
    v_bfe_u32 v34, v1, 3, 1
    v_and_b32 v35, 7, v1
    v_mul_u32_u24 v34, 144, v34
    v_lshl_add_u32 v34, v35, 4, v34
    v_add_u32 v34, s43, v34
    s_lshl_b32 s43, s46, 6
    s_add_u32 s43, s43, %d
    v_mov_b32 v35, s43
    s_lshl_b32 s43, s2, 10
    s_lshl_b32 s44, s39, 7
    s_add_u32 s43, s43, s44
    v_lshl_add_u32 v36, v1, 3, s43
    s_lshl_b32 s43, s46, 3
    s_add_u32 s43, s43, s67
    s_lshl_b32 s43, s43, 9
    s_add_u32 s78, s43, %d
    s_lshl_b32 s44, s38, 3
    s_add_u32 s43, s78, s44
    v_mov_b32 v37, s43
    s_waitcnt vmcnt(0) lgkmcnt(0)
    s_barrier
    """ % (LDS_ML, ML_BASE))
    stamp(a, 7)
    for q in range(4):
        a("ds_read_b128 v[%d:%d], v35 offset:%d" % (96 + 4 * q, 99 + 4 * q, 16 * q))
    for w in range(8):
        a("ds_read_b128 v[%d:%d], v34 offset:%d" % (64 + 4 * w, 67 + 4 * w, LDS_WAVE * w))
    a("s_waitcnt lgkmcnt(8)")
    m = [96 + 2 * w for w in range(8)]
    l = [97 + 2 * w for w in range(8)]
    a("v_max3_f32 v40, v%d, v%d, v%d" % (m[0], m[1], m[2]))
    a("v_max3_f32 v40, v40, v%d, v%d" % (m[3], m[4]))
    a("v_max3_f32 v40, v40, v%d, v%d" % (m[5], m[6]))
    a("v_max_f32 v40, v40, v%d" % m[7])
    for w in range(8):
        a("v_sub_f32 v%d, v%d, v40" % (m[w], m[w]))
    for w in range(8):
        a("v_exp_f32 v%d, v%d" % (m[w], m[w]))
    a("v_mul_f32 v41, v%d, v%d" % (m[0], l[0]))
    for w in range(1, 8):
        a("v_fmac_f32 v41, v%d, v%d" % (m[w], l[w]))
    a("s_waitcnt lgkmcnt(0)")
    for c in range(4):
        a("v_mul_f32 v%d, v%d, v%d" % (44 + c, m[0], 64 + c))
    for w in range(1, 8):
        for c in range(4):
            a("v_fmac_f32 v%d, v%d, v%d" % (44 + c, m[w], 64 + 4 * w + c))
    a("v_cvt_pk_bf16_f32 v44, v44, v45")
    a("v_cvt_pk_bf16_f32 v45, v46, v47")
    a("s_mov_b64 exec, 0xffff")
    a("global_store_dwordx2 v36, v[44:45], s[18:19] sc1")
    a("s_mov_b64 exec, 1")
    a("global_store_dwordx2 v37, v[40:41], s[18:19] sc1")
    a("s_mov_b64 exec, -1")
    a("""
    s_mov_b32 s68, s18
    s_mov_b32 s69, s19
    s_add_u32 s43, s76, s75
    s_lshl_b32 s70, s43, 10
    s_mov_b32 s71, 0x00020000
    s_mov_b32 s80, s18
    s_mov_b32 s81, s19
    s_lshl_b32 s43, s75, 3
    s_add_u32 s82, s78, s43
    s_mov_b32 s83, 0x00020000
    v_lshl_add_u32 v42, v1, 3, s78
    v_lshrrev_b32 v38, 3, v1
    v_and_b32 v48, 7, v1
    s_lshl_b32 s43, s76, 10
    s_lshl_b32 s44, s39, 7
    s_add_u32 s43, s43, s44
    v_lshlrev_b32 v39, 10, v38
    v_lshl_add_u32 v39, v48, 4, v39
    v_add_u32 v39, s43, v39
    v_lshlrev_b32 v38, 2, v38
    s_lshl_b32 s43, s67, 10
    s_add_u32 s43, s43, s44
    v_lshlrev_b32 v43, 4, v48
    v_lshrrev_b32 v49, 4, v1
    v_lshl_add_u32 v43, v49, 2, v43
    v_add_u32 v43, s43, v43
    s_movk_i32 s72, 0x2000
    s_movk_i32 s73, 0x4000
    s_movk_i32 s74, 0x6000
    s_mov_b32 s77, 0x8000
    s_lshl_b32 s43, s67, 5
    v_mov_b32 v2, s43
    v_mov_b32 v3, 1
    v_mov_b32 v5, 0
    s_waitcnt vmcnt(0)
    """)
    stamp(a, 8)
    a("s_barrier")
    a("s_cmp_lg_u32 s39, 0")
    a("s_cbranch_scc1 L_noat")
    a("s_mov_b64 exec, 1")
    a("global_atomic_add v4, v2, v3, s[16:17] sc0")
    a("s_waitcnt vmcnt(0)")
    a("ds_write_b32 v5, v4")
    a("s_mov_b64 exec, -1")
    a("s_waitcnt lgkmcnt(0)")
    a.label("L_noat")
    a("s_barrier")
    a("ds_read_b32 v4, v5")
    a("s_sub_u32 s44, s75, 1")
    a("s_waitcnt lgkmcnt(0)")
    a("v_readfirstlane_b32 s43, v4")
    stamp(a, 9)
    a("s_cmp_lg_u32 s43, s44")
    a("s_cbranch_scc1 L_fin")
    KR = 5
    O = [64 + 4 * k for k in range(KR)]
    a("buffer_load_dwordx2 v[8:9], v42, s[80:83], 0 offen sc1")
    for k in range(KR):
        so = ["0", "s72", "s73", "s74", "s77"][k]
        a("buffer_load_dwordx4 v[%d:%d], v39, s[68:71], %s offen sc1" % (O[k], O[k] + 3, so))
    a("v_mov_b32 v10, 0xff7fffff")
    a("s_waitcnt vmcnt(%d)" % KR)
    if OPT.get("fst"):
        stamp(a, 4)
    a("v_cmp_eq_f32 vcc, 0, v9")
    a("v_cndmask_b32 v8, v8, v10, vcc")
    a("v_mov_b32 v10, v8")
    for rot in (8, 4, 2, 1):
        a("v_max_f32_dpp v10, v10, v10 row_ror:%d row_mask:0xf bank_mask:0xf" % rot)
    xq(a, "v_max_f32", [10], [11])
    a("v_sub_f32 v8, v8, v10")
    a("v_exp_f32 v8, v8")
    a("v_mul_f32 v9, v8, v9")
    for k in range(KR):
        a("ds_bpermute_b32 v%d, v38, v8 offset:%d" % (12 + k, 32 * k))
    for rot in (8, 4, 2, 1):
        a("v_add_f32_dpp v9, v9, v9 row_ror:%d row_mask:0xf bank_mask:0xf" % rot)
    xq(a, "v_add_f32", [9], [11])
    a("v_rcp_f32 v9, v9")
    a("s_mov_b32 s43, 0xffff0000")
    a("s_waitcnt vmcnt(0) lgkmcnt(0)")
    if OPT.get("fst"):
        stamp(a, 5)
    ACC = [20 + i for i in range(8)]
    for k in range(KR):
        for q in range(4):
            a("v_lshlrev_b32 v%d, 16, v%d" % (30 + 2 * q, O[k] + q))
            a("v_and_b32 v%d, s43, v%d" % (31 + 2 * q, O[k] + q))
        for i in range(8):
            if k == 0:
                a("v_mul_f32 v%d, v%d, v%d" % (ACC[i], 12 + k, 30 + i))
            else:
                a("v_fmac_f32 v%d, v%d, v%d" % (ACC[i], 12 + k, 30 + i))
    for i in range(4):
        a("v_permlane32_swap_b32 v%d, v%d" % (ACC[i], ACC[i + 4]))
    for i in range(4):
        a("v_add_f32 v%d, v%d, v%d" % (ACC[i], ACC[i], ACC[i + 4]))
    for i in range(2):
        a("v_permlane16_swap_b32 v%d, v%d" % (ACC[i], ACC[i + 2]))
    for i in range(2):
        a("v_add_f32 v%d, v%d, v%d" % (ACC[i], ACC[i], ACC[i + 2]))
    for i in range(2):
        a("v_add_f32_dpp v%d, v%d, v%d row_ror:8 row_mask:0xf bank_mask:0xf" % (ACC[i], ACC[i], ACC[i]))
    for i in range(2):
        a("v_mul_f32 v%d, v%d, v9" % (ACC[i], ACC[i]))
    a("v_cvt_pk_bf16_f32 v16, v%d, v%d" % (ACC[0], ACC[1]))
    a("s_mov_b32 exec_lo, 0x00ff00ff")
    a("s_mov_b32 exec_hi, 0x00ff00ff")
    a("global_store_dword v43, v16, s[14:15]")
    if OPT.get("fst"):
        stamp(a, 3)
    if OPT["diag"]:
        a("s_waitcnt vmcnt(0)")
    a.label("L_fin")
    stamp(a, 10)
    dump_stamps(a, 11)
    a.label("L_end")
    a("s_endpgm")


def kd(name, vgpr, sgpr):
    acc = (vgpr + 3) // 4 * 4
    return """.p2align 6
.amdhsa_kernel %s
  .amdhsa_next_free_vgpr %d
  .amdhsa_next_free_sgpr %d
  .amdhsa_accum_offset %d
  .amdhsa_group_segment_fixed_size 0
  .amdhsa_kernarg_size 64
  .amdhsa_user_sgpr_count 2
  .amdhsa_user_sgpr_kernarg_segment_ptr 1
  .amdhsa_system_sgpr_workgroup_id_x 1
.end_amdhsa_kernel
""" % (name, vgpr, sgpr, acc)


def main():
    for arg in sys.argv[2:]:
        k, _, v = arg.partition("=")
        if k == "ld":
            OPT["ld"] = (" " + v.replace("+", " ")) if v else ""
        elif k == "nh":
            OPT["nh"] = v
        elif k == "nb":
            global NB
            NB = int(v)
        else:
            OPT[k] = int(v) if v else 1
    out = list(HEADER)
    out.append("; @launch grid=(256,1,1) block=(512,1,1) lds=%d" % LDS_TOTAL)
    out.append('.amdgcn_target "amdgcn-amd-amdhsa--gfx950"')
    out.append(".text")
    a = Asm()
    gen(a)
    nm = NAME + "_kernel"
    out.append(".globl %s\n.p2align 8\n.type %s,@function\n%s:" % (nm, nm, nm))
    out.append(a.text())
    out.append('.section .rodata,"a"')
    out.append(kd(nm, max(BUF0 + 32 * NB, OPT.get("minv", 136)), 100))
    open(sys.argv[1], "w").write("\n".join(out))


if __name__ == "__main__":
    main()
```

```python
import sys
import struct
from asmlib import Asm

NAME = "standalone__paged_block_table_kv_pagedattention__decode"
HEADER = open("cdna_kernels/%s.s.ref" % NAME).read().split("\n")[:9]

KV_BYTES = 2052 * 32768
NB = 5
BUF0 = 64
SCALE = 1.4426950408889634 * (128 ** -0.5)
ML_BASE = 512 << 10
LDS_WAVE = 2432
LDS_ML = 8 * LDS_WAVE
LDS_TOTAL = LDS_ML + 256
RPS = 10

OPT = dict(diag=0, ld=" nt", nh="32,32,32,32,32,32,32,32")

S_BT = 28
S_S, S_W, S_I, S_E0, S_LIM0 = 38, 39, 40, 41, 42
S_STR = 45
S_MASK = 46
S_ST = 54
S_CL, S_H = 66, 67
S_N, S_B = 75, 76
V_M0, V_M1 = 10, 11
V_Q = 12
V_C, V_NINF, V_QUAD = 16, 17, 18
V_AL = 19
V_M, V_L = 20, 21
V_X, V_Y = 22, 23
V_ACC = 24
V_D = 32
V_T = 48
V_B = 52


def f32(x):
    return "0x%08x" % struct.unpack("<I", struct.pack("<f", x))[0]


def kreg(b, g):
    r = BUF0 + 32 * b + 4 * g
    return "v[%d:%d]" % (r, r + 3)


def vreg(b, g):
    r = BUF0 + 32 * b + 16 + 4 * g
    return "v[%d:%d]" % (r, r + 3)


def vreg_half(b, g, u):
    r = BUF0 + 32 * b + 16 + 4 * g + 2 * u
    return "v[%d:%d]" % (r, r + 1)


def stamp(a, k):
    if OPT["diag"]:
        a("s_memrealtime s[94:95]")
        a("s_waitcnt lgkmcnt(0)")
        a("s_mov_b32 s%d, s94" % (S_ST + k))


def dump_stamps(a, n):
    if not OPT["diag"]:
        return
    if OPT["diag"] == 3:
        a("s_mov_b64 exec, 1")
        a("s_cmp_lg_u32 s39, 0")
        a("s_cbranch_scc1 L_dd")
        a("s_cmp_gt_u32 s2, 7")
        a("s_cbranch_scc1 L_dd")
        a("s_add_u32 s43, s2, 1")
        a("s_cmp_eq_u32 s43, 8")
        a("s_cselect_b32 s43, 9, s43")
        a("s_lshl_b32 s43, s43, 2")
        a("v_mov_b32 v2, s43")
        a("v_mov_b32 v3, s%d" % S_ST)
        a("global_store_dword v2, v3, s[16:17]")
        a.label("L_dd")
        return
    a("s_mov_b64 exec, 1")
    a("s_lshl_b32 s43, s2, 3")
    a("s_add_u32 s43, s43, s%d" % S_W)
    a("s_lshl_b32 s43, s43, 6")
    a("s_add_u32 s43, s43, 0x4000000")
    a("v_mov_b32 v2, s43")
    for k in range(n):
        a("v_mov_b32 v3, s%d" % (S_ST + k))
        a("global_store_dword v2, v3, s[18:19] offset:%d" % (4 * k))
    a("s_getreg_b32 s43, hwreg(HW_REG_XCC_ID)")
    a("v_mov_b32 v3, s43")
    a("global_store_dword v2, v3, s[18:19] offset:56")
    a("v_mov_b32 v3, s%d" % S_H)
    a("global_store_dword v2, v3, s[18:19] offset:60")


def issue_loads(a, e, NSLOT):
    j = NSLOT - 1 - e
    b = e % NB
    a("s_lshl_b32 s%d, s%d, 15" % (S_BT + j, S_BT + j))
    for g in range(4):
        a("buffer_load_dwordx4 %s, v%d, s[20:23], s%d offen%s" % (kreg(b, g), 2 + g, S_BT + j, OPT["ld"]))
    for g in range(4):
        a("buffer_load_dwordx4 %s, v%d, s[24:27], s%d offen%s" % (vreg(b, g), 6 + g, S_BT + j, OPT["ld"]))


def xq(a, op, xs, ys):
    for sw in ("v_permlane32_swap_b32", "v_permlane16_swap_b32"):
        for x, y in zip(xs, ys):
            a("v_mov_b32 v%d, v%d" % (y, x))
        for x, y in zip(xs, ys):
            a("%s v%d, v%d" % (sw, x, y))
        for x, y in zip(xs, ys):
            a("%s v%d, v%d, v%d" % (op, x, x, y))


def iteration(a, e, NSLOT):
    j = NSLOT - 1 - e
    b = e % NB
    younger = 8 * (min(e + NB - 1, NSLOT - 1) - e)
    a("s_waitcnt vmcnt(%d)" % (younger + 4))
    if e == NSLOT - 4:
        stamp(a, 4)
    if e == NSLOT - 1:
        stamp(a, 5)
    for g in range(4):
        a("v_mfma_f32_16x16x32_bf16 v[%d:%d], %s, v[%d:%d], 0" % (V_D + 4 * g, V_D + 4 * g + 3, kreg(b, g), V_Q, V_Q + 3))
    a("s_mul_i32 s43, s%d, %d" % (S_STR, 16 * j))
    a("s_sub_i32 s43, s%d, s43" % S_LIM0)
    for g in range(4):
        d = V_D + 4 * g
        t = V_T + g
        a("v_mul_f32_dpp v%d, v%d, v%d quad_perm:[0,0,0,0] row_mask:0xf bank_mask:0xf" % (t, d, V_C))
        for r in range(1, 4):
            a("v_fmac_f32_dpp v%d, v%d, v%d quad_perm:[%d,%d,%d,%d] row_mask:0xf bank_mask:0xf" % (t, d + r, V_C, r, r, r, r))
    a("s_cmp_ge_i32 s43, 16")
    a("s_cbranch_scc1 L_nomask_%d" % e)
    for g in range(4):
        a("s_sub_i32 s44, s43, %d" % (4 * g))
        a("v_cmp_gt_i32_e64 s[%d:%d], s44, v%d" % (S_MASK + 2 * g, S_MASK + 1 + 2 * g, V_QUAD))
    for g in range(4):
        a("v_cndmask_b32_e64 v%d, v%d, v%d, s[%d:%d]" % (V_T + g, V_NINF, V_T + g, S_MASK + 2 * g, S_MASK + 1 + 2 * g))
    a.label("L_nomask_%d" % e)
    a("v_max3_f32 v%d, v%d, v%d, v%d" % (V_X, V_T, V_T + 1, V_T + 2))
    a("v_max3_f32 v%d, v%d, v%d, v%d" % (V_X, V_X, V_T + 3, V_M))
    xq(a, "v_max_f32", [V_X], [V_Y])
    a("v_sub_f32 v%d, v%d, v%d" % (V_AL, V_M, V_X))
    for g in range(4):
        a("v_sub_f32 v%d, v%d, v%d" % (V_T + g, V_T + g, V_X))
    a("v_exp_f32 v%d, v%d" % (V_AL, V_AL))
    for g in range(4):
        a("v_exp_f32 v%d, v%d" % (V_T + g, V_T + g))
    a("v_mov_b32 v%d, v%d" % (V_M, V_X))
    for r in range(8):
        a("v_mul_f32 v%d, v%d, v%d" % (V_ACC + r, V_ACC + r, V_AL))
    for g in range(4):
        a("v_cvt_pk_bf16_f32 v%d, v%d, v%d" % (V_D + g, V_T + g, V_T + g))
    a("v_fma_f32 v%d, v%d, v%d, v%d" % (V_L, V_L, V_AL, V_T))
    a("v_add_f32 v%d, v%d, v%d" % (V_X, V_T + 1, V_T + 2))
    for g in range(4):
        a("v_and_b32 v%d, v%d, v%d" % (V_B + 2 * g, V_D + g, V_M0))
        a("v_and_b32 v%d, v%d, v%d" % (V_B + 2 * g + 1, V_D + g, V_M1))
    a("v_add_f32 v%d, v%d, v%d" % (V_L, V_L, V_T + 3))
    a("v_add_f32 v%d, v%d, v%d" % (V_L, V_L, V_X))
    if e == NSLOT - 1:
        xq(a, "v_add_f32", [V_L], [V_Y])
    a("s_waitcnt vmcnt(%d)" % younger)
    for g in range(4):
        for u in range(2):
            acc = "v[%d:%d]" % (V_ACC + 4 * u, V_ACC + 4 * u + 3)
            a("v_mfma_f32_16x16x16_bf16 %s, %s, v[%d:%d], %s" % (acc, vreg_half(b, g, u), V_B + 2 * g, V_B + 2 * g + 1, acc))
    if e + NB <= NSLOT - 1:
        issue_loads(a, e + NB, NSLOT)


def gen(a):
    nh = [int(x) for x in OPT["nh"].split(",")]
    assert sum(nh) == 256 and max(nh) <= 40
    B = [sum(nh[:h]) for h in range(8)]
    NSLOT = -(-2048 // (8 * min(nh)))
    assert NSLOT <= 10
    FIRST = NSLOT - 5
    TV = BUF0 + 32 * NB
    a("s_cmp_ge_u32 s2, 256")
    a("s_cbranch_scc1 L_end")
    stamp(a, 0)
    a("s_load_dwordx16 s[4:19], s[0:1], 0")
    a("v_lshrrev_b32 v22, 6, v0")
    pk = lambda h: h | (B[h] << 3) | (nh[h] << 11)
    mg = lambda h: (1 << 32) // (128 * nh[h]) + 1
    a("s_mov_b32 s43, 0x%x" % pk(0))
    a("v_readfirstlane_b32 s39, v22")
    a("s_mov_b32 s79, 0x%x" % mg(0))
    for h in range(1, 8):
        a("s_cmp_ge_u32 s2, %d" % B[h])
        a("s_cselect_b32 s43, 0x%x, s43" % pk(h))
        if mg(h) != mg(h - 1) or True:
            a("s_cselect_b32 s79, 0x%x, s79" % mg(h))
    a("""
    s_lshr_b32 s75, s43, 11
    s_bfe_u32 s76, s43, 0x80003
    s_and_b32 s67, s43, 7
    s_sub_u32 s38, s2, s76
    s_mul_i32 s40, s39, s75
    s_add_u32 s40, s40, s38
    s_lshl_b32 s45, s75, 3
    s_lshl_b32 s44, s75, 5
    s_lshl_b32 s80, s40, 2
    """)
    prev = 80
    for j in range(1, NSLOT):
        if j == 1:
            a("s_add_u32 s43, s80, s44")
        else:
            a("s_add_u32 s43, s43, s44")
        a("s_min_u32 s%d, s43, 0x1ffc" % (80 + j))
    a("s_waitcnt lgkmcnt(0)")
    stamp(a, 1)
    a("s_load_dword s%d, s[12:13], 0" % S_CL)
    for j in range(NSLOT):
        a("s_load_dword s%d, s[10:11], s%d" % (S_BT + j, 80 + j))
    a("""
    v_and_b32 v1, 63, v0
    s_lshl_b32 s44, s67, 10
    v_lshrrev_b32 v18, 4, v1
    v_bfe_u32 v22, v1, 2, 2
    v_and_b32 v23, 3, v1
    v_lshlrev_b32 v24, 4, v23
    v_lshl_add_u32 v24, v18, 6, v24
    v_lshl_add_u32 v26, v22, 8, v24
    v_add_u32 v26, s44, v26
    global_load_dwordx4 v[12:15], v26, s[4:5]
    s_lshl_b32 s44, s67, 8
    v_lshl_add_u32 v2, v22, 11, v24
    v_add_u32 v2, s44, v2
    v_add_u32 v3, 0x2000, v2
    v_add_u32 v4, 0x4000, v2
    v_add_u32 v5, 0x6000, v2
    v_and_b32 v25, 15, v1
    v_lshlrev_b32 v25, 4, v25
    v_lshl_add_u32 v6, v18, 11, v25
    v_add_u32 v6, s44, v6
    v_add_u32 v7, 0x2000, v6
    v_add_u32 v8, 0x4000, v6
    v_add_u32 v9, 0x6000, v6
    s_mov_b32 s20, s6
    s_mov_b32 s21, s7
    s_mov_b32 s22, %d
    s_mov_b32 s23, 0x00020000
    s_mov_b32 s24, s8
    s_mov_b32 s25, s9
    s_mov_b32 s26, %d
    s_mov_b32 s27, 0x00020000
    v_and_b32 v24, 1, v23
    v_lshlrev_b32 v24, 4, v24
    v_mov_b32 v25, 0xffff
    v_lshlrev_b32 v25, v24, v25
    v_cmp_gt_u32 vcc, 2, v23
    v_mov_b32 v17, 0xff800000
    v_mov_b32 v20, 0xff7fffff
    v_mov_b32 v21, 0
    v_cndmask_b32 v10, 0, v25, vcc
    v_cndmask_b32_e64 v11, v25, 0, vcc
    s_lshl_b32 s77, s75, 7
    s_lshl_b32 s43, s40, 4
    s_sub_u32 s90, s77, s43
    s_sub_u32 s90, s90, 1
    s_mov_b32 s91, %s
    """ % (KV_BYTES, KV_BYTES, f32(SCALE)))
    a("""
    s_mul_i32 s43, s39, {LW}
    v_mul_u32_u24 v32, 152, v22
    v_mul_u32_u24 v33, 36, v18
    v_add3_u32 v32, v32, v33, v23
    v_lshl_add_u32 v{T0}, v32, 2, s43
    s_lshl_b32 s44, s39, 3
    s_add_u32 s44, s44, {LML}
    v_lshl_add_u32 v{T1}, v22, 6, s44
    s_lshr_b32 s92, s39, 1
    s_and_b32 s93, s39, 1
    s_mul_i32 s43, s92, 608
    s_mul_i32 s44, s93, 288
    s_add_u32 s43, s43, s44
    v_bfe_u32 v34, v1, 3, 1
    v_and_b32 v35, 7, v1
    v_mul_u32_u24 v34, 144, v34
    v_lshl_add_u32 v34, v35, 4, v34
    v_add_u32 v{T2}, s43, v34
    s_lshl_b32 s43, s92, 6
    s_add_u32 s43, s43, {LML}
    v_mov_b32 v{T3}, s43
    s_lshl_b32 s43, s2, 10
    s_lshl_b32 s44, s39, 7
    s_add_u32 s43, s43, s44
    v_lshl_add_u32 v{T4}, v1, 3, s43
    s_lshl_b32 s43, s92, 3
    s_add_u32 s43, s43, s67
    s_lshl_b32 s43, s43, 9
    s_add_u32 s78, s43, {MLB}
    s_lshl_b32 s44, s38, 3
    s_add_u32 s43, s78, s44
    v_mov_b32 v{T5}, s43
    """.format(LW=LDS_WAVE, LML=LDS_ML, MLB=ML_BASE, T0=TV, T1=TV + 1, T2=TV + 2, T3=TV + 3, T4=TV + 4, T5=TV + 5))
    for r in range(8):
        a("v_mov_b32 v%d, 0" % (V_ACC + r))
    a("s_waitcnt lgkmcnt(0)")
    stamp(a, 2)
    a("""
    s_cmp_lt_i32 s66, 1
    s_cselect_b32 s66, 0x8000, s66
    s_cselect_b32 s91, 0, s91
    s_min_i32 s66, s66, 0x8000
    s_add_i32 s44, s66, s90
    s_max_i32 s44, s44, 0
    s_mul_hi_u32 s44, s44, s79
    s_sub_u32 s41, %d, s44
    """ % NSLOT)
    a("s_cmp_ge_u32 s41, %d" % FIRST)
    a("s_cbranch_scc1 L_pl_%d" % FIRST)
    for e in range(NSLOT):
        a.label("L_pl_%d" % e)
        a("s_cmp_gt_u32 s41, %d" % e)
        a("s_cbranch_scc1 L_pl_%d" % (e + 1))
        if e >= NB:
            a("s_cmp_gt_u32 s41, %d" % (e - NB))
            a("s_cbranch_scc0 L_pl_%d" % NSLOT)
        issue_loads(a, e, NSLOT)
    a.label("L_pl_%d" % NSLOT)
    a("s_lshl_b32 s43, s40, 4")
    a("s_sub_i32 s42, s66, s43")
    a("v_mov_b32 v16, s91")
    stamp(a, 3)
    a("s_cmp_ge_u32 s41, %d" % FIRST)
    a("s_cbranch_scc1 L_it_%d" % FIRST)
    for e in range(NSLOT):
        a.label("L_it_%d" % e)
        a("s_cmp_gt_u32 s41, %d" % e)
        a("s_cbranch_scc1 L_it_%d" % (e + 1))
        iteration(a, e, NSLOT)
    a.label("L_it_%d" % NSLOT)
    stamp(a, 6)
    for r in range(4):
        a("ds_write2_b32 v%d, v%d, v%d offset0:%d offset1:%d" % (TV + 0, V_ACC + r, V_ACC + 4 + r, 8 * r, 8 * r + 4))
    a("ds_write_b64 v%d, v[20:21]" % (TV + 1))
    a("s_waitcnt vmcnt(0) lgkmcnt(0)")
    a("s_barrier")
    stamp(a, 7)
    for q in range(4):
        a("ds_read_b128 v[%d:%d], v%d offset:%d" % (96 + 4 * q, 99 + 4 * q, TV + 3, 16 * q))
    for w in range(8):
        a("ds_read_b128 v[%d:%d], v%d offset:%d" % (64 + 4 * w, 67 + 4 * w, TV + 2, LDS_WAVE * w))
    a("s_waitcnt lgkmcnt(8)")
    m = [96 + 2 * w for w in range(8)]
    l = [97 + 2 * w for w in range(8)]
    a("v_max3_f32 v40, v%d, v%d, v%d" % (m[0], m[1], m[2]))
    a("v_max3_f32 v40, v40, v%d, v%d" % (m[3], m[4]))
    a("v_max3_f32 v40, v40, v%d, v%d" % (m[5], m[6]))
    a("v_max_f32 v40, v40, v%d" % m[7])
    for w in range(8):
        a("v_sub_f32 v%d, v%d, v40" % (m[w], m[w]))
    for w in range(8):
        a("v_exp_f32 v%d, v%d" % (m[w], m[w]))
    a("v_mul_f32 v41, v%d, v%d" % (m[0], l[0]))
    for w in range(1, 8):
        a("v_fmac_f32 v41, v%d, v%d" % (m[w], l[w]))
    a("s_waitcnt lgkmcnt(0)")
    for c in range(4):
        a("v_mul_f32 v%d, v%d, v%d" % (44 + c, m[0], 64 + c))
    for w in range(1, 8):
        for c in range(4):
            a("v_fmac_f32 v%d, v%d, v%d" % (44 + c, m[w], 64 + 4 * w + c))
    a("v_cvt_pk_bf16_f32 v44, v44, v45")
    a("v_cvt_pk_bf16_f32 v45, v46, v47")
    a("s_mov_b64 exec, 0xffff")
    a("global_store_dwordx2 v%d, v[44:45], s[18:19] sc1" % (TV + 4))
    a("s_mov_b64 exec, 1")
    a("global_store_dwordx2 v%d, v[40:41], s[18:19] sc1" % (TV + 5))
    a("s_mov_b64 exec, -1")
    a("""
    s_mov_b32 s68, s18
    s_mov_b32 s69, s19
    s_add_u32 s43, s76, s75
    s_lshl_b32 s70, s43, 10
    s_mov_b32 s71, 0x00020000
    s_mov_b32 s80, s18
    s_mov_b32 s81, s19
    s_lshl_b32 s43, s75, 3
    s_add_u32 s82, s78, s43
    s_mov_b32 s83, 0x00020000
    v_lshl_add_u32 v42, v1, 3, s78
    v_lshrrev_b32 v38, 3, v1
    v_and_b32 v48, 7, v1
    s_lshl_b32 s43, s76, 10
    s_lshl_b32 s44, s39, 7
    s_add_u32 s43, s43, s44
    v_lshlrev_b32 v39, 10, v38
    v_lshl_add_u32 v39, v48, 4, v39
    v_add_u32 v39, s43, v39
    v_lshlrev_b32 v38, 2, v38
    s_lshl_b32 s43, s67, 10
    s_add_u32 s43, s43, s44
    v_lshlrev_b32 v43, 4, v48
    v_lshrrev_b32 v49, 4, v1
    v_lshl_add_u32 v43, v49, 2, v43
    v_add_u32 v43, s43, v43
    s_movk_i32 s72, 0x2000
    s_movk_i32 s73, 0x4000
    s_movk_i32 s74, 0x6000
    s_mov_b32 s77, 0x8000
    s_lshl_b32 s43, s67, 5
    v_mov_b32 v2, s43
    v_mov_b32 v3, 1
    v_mov_b32 v5, 0
    s_waitcnt vmcnt(0)
    """)
    stamp(a, 8)
    a("s_barrier")
    a("s_cmp_lg_u32 s39, 0")
    a("s_cbranch_scc1 L_noat")
    a("s_mov_b64 exec, 1")
    a("global_atomic_add v4, v2, v3, s[16:17] sc0")
    a("s_waitcnt vmcnt(0)")
    a("ds_write_b32 v5, v4")
    a("s_mov_b64 exec, -1")
    a("s_waitcnt lgkmcnt(0)")
    a.label("L_noat")
    a("s_barrier")
    a("ds_read_b32 v4, v5")
    a("s_sub_u32 s44, s75, 1")
    a("s_waitcnt lgkmcnt(0)")
    a("v_readfirstlane_b32 s43, v4")
    stamp(a, 9)
    a("s_cmp_lg_u32 s43, s44")
    a("s_cbranch_scc1 L_fin")
    KR = 5
    O = [64 + 4 * k for k in range(KR)]
    a("buffer_load_dwordx2 v[8:9], v42, s[80:83], 0 offen sc1")
    for k in range(KR):
        so = ["0", "s72", "s73", "s74", "s77"][k]
        a("buffer_load_dwordx4 v[%d:%d], v39, s[68:71], %s offen sc1" % (O[k], O[k] + 3, so))
    a("v_mov_b32 v10, 0xff7fffff")
    a("s_waitcnt vmcnt(%d)" % KR)
    if OPT.get("fst"):
        stamp(a, 4)
    a("v_cmp_eq_f32 vcc, 0, v9")
    a("v_cndmask_b32 v8, v8, v10, vcc")
    a("v_mov_b32 v10, v8")
    for rot in (8, 4, 2, 1):
        a("v_max_f32_dpp v10, v10, v10 row_ror:%d row_mask:0xf bank_mask:0xf" % rot)
    xq(a, "v_max_f32", [10], [11])
    a("v_sub_f32 v8, v8, v10")
    a("v_exp_f32 v8, v8")
    a("v_mul_f32 v9, v8, v9")
    for k in range(KR):
        a("ds_bpermute_b32 v%d, v38, v8 offset:%d" % (12 + k, 32 * k))
    for rot in (8, 4, 2, 1):
        a("v_add_f32_dpp v9, v9, v9 row_ror:%d row_mask:0xf bank_mask:0xf" % rot)
    xq(a, "v_add_f32", [9], [11])
    a("v_rcp_f32 v9, v9")
    a("s_mov_b32 s43, 0xffff0000")
    a("s_waitcnt vmcnt(0) lgkmcnt(0)")
    if OPT.get("fst"):
        stamp(a, 5)
    ACC = [20 + i for i in range(8)]
    for k in range(KR):
        for q in range(4):
            a("v_lshlrev_b32 v%d, 16, v%d" % (30 + 2 * q, O[k] + q))
            a("v_and_b32 v%d, s43, v%d" % (31 + 2 * q, O[k] + q))
        for i in range(8):
            if k == 0:
                a("v_mul_f32 v%d, v%d, v%d" % (ACC[i], 12 + k, 30 + i))
            else:
                a("v_fmac_f32 v%d, v%d, v%d" % (ACC[i], 12 + k, 30 + i))
    for i in range(4):
        a("v_permlane32_swap_b32 v%d, v%d" % (ACC[i], ACC[i + 4]))
    for i in range(4):
        a("v_add_f32 v%d, v%d, v%d" % (ACC[i], ACC[i], ACC[i + 4]))
    for i in range(2):
        a("v_permlane16_swap_b32 v%d, v%d" % (ACC[i], ACC[i + 2]))
    for i in range(2):
        a("v_add_f32 v%d, v%d, v%d" % (ACC[i], ACC[i], ACC[i + 2]))
    for i in range(2):
        a("v_add_f32_dpp v%d, v%d, v%d row_ror:8 row_mask:0xf bank_mask:0xf" % (ACC[i], ACC[i], ACC[i]))
    for i in range(2):
        a("v_mul_f32 v%d, v%d, v9" % (ACC[i], ACC[i]))
    a("v_cvt_pk_bf16_f32 v16, v%d, v%d" % (ACC[0], ACC[1]))
    a("s_mov_b32 exec_lo, 0x00ff00ff")
    a("s_mov_b32 exec_hi, 0x00ff00ff")
    a("global_store_dword v43, v16, s[14:15]")
    if OPT.get("fst"):
        stamp(a, 3)
    if OPT["diag"]:
        a("s_waitcnt vmcnt(0)")
    a.label("L_fin")
    stamp(a, 10)
    dump_stamps(a, 11)
    a.label("L_end")
    a("s_endpgm")


def kd(name, vgpr, sgpr):
    acc = (vgpr + 3) // 4 * 4
    return """.p2align 6
.amdhsa_kernel %s
  .amdhsa_next_free_vgpr %d
  .amdhsa_next_free_sgpr %d
  .amdhsa_accum_offset %d
  .amdhsa_group_segment_fixed_size 0
  .amdhsa_kernarg_size 64
  .amdhsa_user_sgpr_count 2
  .amdhsa_user_sgpr_kernarg_segment_ptr 1
  .amdhsa_system_sgpr_workgroup_id_x 1
.end_amdhsa_kernel
""" % (name, vgpr, sgpr, acc)


def main():
    for arg in sys.argv[2:]:
        k, _, v = arg.partition("=")
        if k == "ld":
            OPT["ld"] = (" " + v.replace("+", " ")) if v else ""
        elif k == "nh":
            OPT["nh"] = v
        elif k == "nb":
            global NB
            NB = int(v)
        else:
            OPT[k] = int(v) if v else 1
    out = list(HEADER)
    out.append("; @launch grid=(256,1,1) block=(512,1,1) lds=%d" % LDS_TOTAL)
    out.append('.amdgcn_target "amdgcn-amd-amdhsa--gfx950"')
    out.append(".text")
    a = Asm()
    gen(a)
    nm = NAME + "_kernel"
    out.append(".globl %s\n.p2align 8\n.type %s,@function\n%s:" % (nm, nm, nm))
    out.append(a.text())
    out.append('.section .rodata,"a"')
    out.append(kd(nm, max(BUF0 + 32 * NB + 8, OPT.get("minv", 136)), 100))
    open(sys.argv[1], "w").write("\n".join(out))


if __name__ == "__main__":
    main()
```

```python
import sys
import struct
from asmlib import Asm

NAME = "standalone__paged_block_table_kv_pagedattention__decode"
HEADER = open("cdna_kernels/%s.s.ref" % NAME).read().split("\n")[:9]

KV_BYTES = 2052 * 32768
NB = 2
BUF0 = 64
SCALE = 1.4426950408889634 * (128 ** -0.5)
ML_BASE = 512 << 10
LDS_WAVE = 2432
LDS_ML = 8 * LDS_WAVE
LDS_TOTAL = LDS_ML + 256
RPS = 10

OPT = dict(diag=0, ld=" nt", nh="32,32,32,32,32,32,32,32", w=4)

S_BT = 28
S_S, S_W, S_I, S_E0, S_LIM0 = 38, 39, 40, 41, 42
S_STR = 45
S_MASK = 46
S_ST = 54
S_CL, S_H = 66, 67
S_N, S_B = 75, 76
V_M0, V_M1 = 10, 11
V_Q = 12
V_C, V_NINF, V_QUAD = 16, 17, 18
V_AL = 19
V_M, V_L = 20, 21
V_X, V_Y = 22, 23
V_ACC = 24
V_D = 32
V_T = 48
V_B = 52


def f32(x):
    return "0x%08x" % struct.unpack("<I", struct.pack("<f", x))[0]


def kreg(b, g):
    r = BUF0 + 32 * b + 4 * g
    return "v[%d:%d]" % (r, r + 3)


def vreg(b, g):
    r = BUF0 + 32 * b + 16 + 4 * g
    return "v[%d:%d]" % (r, r + 3)


def vreg_half(b, g, u):
    r = BUF0 + 32 * b + 16 + 4 * g + 2 * u
    return "v[%d:%d]" % (r, r + 1)


def stamp(a, k):
    if OPT["diag"]:
        a("s_memrealtime s[94:95]")
        a("s_waitcnt lgkmcnt(0)")
        a("s_mov_b32 s%d, s94" % (S_ST + k))


def dump_stamps(a, n):
    if not OPT["diag"]:
        return
    if OPT["diag"] == 3:
        a("s_mov_b64 exec, 1")
        a("s_cmp_lg_u32 s39, 0")
        a("s_cbranch_scc1 L_dd")
        a("s_cmp_gt_u32 s2, 7")
        a("s_cbranch_scc1 L_dd")
        a("s_add_u32 s43, s2, 1")
        a("s_cmp_eq_u32 s43, 8")
        a("s_cselect_b32 s43, 9, s43")
        a("s_lshl_b32 s43, s43, 2")
        a("v_mov_b32 v2, s43")
        a("v_mov_b32 v3, s%d" % S_ST)
        a("global_store_dword v2, v3, s[16:17]")
        a.label("L_dd")
        return
    a("s_mov_b64 exec, 1")
    a("s_lshl_b32 s43, s2, 3")
    a("s_add_u32 s43, s43, s%d" % S_W)
    a("s_lshl_b32 s43, s43, 6")
    a("s_add_u32 s43, s43, 0x4000000")
    a("v_mov_b32 v2, s43")
    for k in range(n):
        a("v_mov_b32 v3, s%d" % (S_ST + k))
        a("global_store_dword v2, v3, s[18:19] offset:%d" % (4 * k))
    a("s_getreg_b32 s43, hwreg(HW_REG_XCC_ID)")
    a("v_mov_b32 v3, s43")
    a("global_store_dword v2, v3, s[18:19] offset:56")
    a("v_mov_b32 v3, s%d" % S_H)
    a("global_store_dword v2, v3, s[18:19] offset:60")


def one_load(a, e, k, NSLOT):
    j = NSLOT - 1 - e
    b = e % NB
    if k == 0:
        a("s_lshl_b32 s%d, s%d, 15" % (S_BT + j, S_BT + j))
    if k < 4:
        a("buffer_load_dwordx4 %s, v%d, s[20:23], s%d offen%s" % (kreg(b, k), 2 + k, S_BT + j, OPT["ld"]))
    else:
        a("buffer_load_dwordx4 %s, v%d, s[24:27], s%d offen%s" % (vreg(b, k - 4), 2 + k, S_BT + j, OPT["ld"]))


def step(a, e, k, NSLOT):
    W = OPT["w"]
    last = e == NSLOT - 1
    a("s_waitcnt vmcnt(%d)" % (min(W - 1, 7 - k) if last else W - 1))
    n = k + W
    if n < 8:
        one_load(a, e, n, NSLOT)
    elif not last:
        one_load(a, e + 1, n - 8, NSLOT)


def xq(a, op, xs, ys):
    for sw in ("v_permlane32_swap_b32", "v_permlane16_swap_b32"):
        for x, y in zip(xs, ys):
            a("v_mov_b32 v%d, v%d" % (y, x))
        for x, y in zip(xs, ys):
            a("%s v%d, v%d" % (sw, x, y))
        for x, y in zip(xs, ys):
            a("%s v%d, v%d, v%d" % (op, x, x, y))


def iteration(a, e, NSLOT):
    j = NSLOT - 1 - e
    b = e % NB
    for g in range(4):
        step(a, e, g, NSLOT)
        a("v_mfma_f32_16x16x32_bf16 v[%d:%d], %s, v[%d:%d], 0" % (V_D + 4 * g, V_D + 4 * g + 3, kreg(b, g), V_Q, V_Q + 3))
    if e == NSLOT - 1:
        stamp(a, 5)
    a("s_mul_i32 s43, s%d, %d" % (S_STR, 16 * j))
    a("s_sub_i32 s43, s%d, s43" % S_LIM0)
    for g in range(4):
        d = V_D + 4 * g
        t = V_T + g
        a("v_mul_f32_dpp v%d, v%d, v%d quad_perm:[0,0,0,0] row_mask:0xf bank_mask:0xf" % (t, d, V_C))
        for r in range(1, 4):
            a("v_fmac_f32_dpp v%d, v%d, v%d quad_perm:[%d,%d,%d,%d] row_mask:0xf bank_mask:0xf" % (t, d + r, V_C, r, r, r, r))
    a("s_cmp_ge_i32 s43, 16")
    a("s_cbranch_scc1 L_nomask_%d" % e)
    for g in range(4):
        a("s_sub_i32 s44, s43, %d" % (4 * g))
        a("v_cmp_gt_i32_e64 s[%d:%d], s44, v%d" % (S_MASK + 2 * g, S_MASK + 1 + 2 * g, V_QUAD))
    for g in range(4):
        a("v_cndmask_b32_e64 v%d, v%d, v%d, s[%d:%d]" % (V_T + g, V_NINF, V_T + g, S_MASK + 2 * g, S_MASK + 1 + 2 * g))
    a.label("L_nomask_%d" % e)
    a("v_max3_f32 v%d, v%d, v%d, v%d" % (V_X, V_T, V_T + 1, V_T + 2))
    a("v_max3_f32 v%d, v%d, v%d, v%d" % (V_X, V_X, V_T + 3, V_M))
    xq(a, "v_max_f32", [V_X], [V_Y])
    a("v_sub_f32 v%d, v%d, v%d" % (V_AL, V_M, V_X))
    for g in range(4):
        a("v_sub_f32 v%d, v%d, v%d" % (V_T + g, V_T + g, V_X))
    a("v_exp_f32 v%d, v%d" % (V_AL, V_AL))
    for g in range(4):
        a("v_exp_f32 v%d, v%d" % (V_T + g, V_T + g))
    a("v_mov_b32 v%d, v%d" % (V_M, V_X))
    for r in range(8):
        a("v_mul_f32 v%d, v%d, v%d" % (V_ACC + r, V_ACC + r, V_AL))
    for g in range(4):
        a("v_cvt_pk_bf16_f32 v%d, v%d, v%d" % (V_D + g, V_T + g, V_T + g))
    a("v_fma_f32 v%d, v%d, v%d, v%d" % (V_L, V_L, V_AL, V_T))
    a("v_add_f32 v%d, v%d, v%d" % (V_X, V_T + 1, V_T + 2))
    for g in range(4):
        a("v_and_b32 v%d, v%d, v%d" % (V_B + 2 * g, V_D + g, V_M0))
        a("v_and_b32 v%d, v%d, v%d" % (V_B + 2 * g + 1, V_D + g, V_M1))
    a("v_add_f32 v%d, v%d, v%d" % (V_L, V_L, V_T + 3))
    a("v_add_f32 v%d, v%d, v%d" % (V_L, V_L, V_X))
    if e == NSLOT - 1:
        xq(a, "v_add_f32", [V_L], [V_Y])
    for g in range(4):
        step(a, e, 4 + g, NSLOT)
        for u in range(2):
            acc = "v[%d:%d]" % (V_ACC + 4 * u, V_ACC + 4 * u + 3)
            a("v_mfma_f32_16x16x16_bf16 %s, %s, v[%d:%d], %s" % (acc, vreg_half(b, g, u), V_B + 2 * g, V_B + 2 * g + 1, acc))


def gen(a):
    nh = [int(x) for x in OPT["nh"].split(",")]
    assert sum(nh) == 256 and max(nh) <= 40
    B = [sum(nh[:h]) for h in range(8)]
    NSLOT = -(-2048 // (8 * min(nh)))
    assert NSLOT <= 10
    FIRST = NSLOT - 5
    TV = max(BUF0 + 32 * NB, 128)
    a("s_cmp_ge_u32 s2, 256")
    a("s_cbranch_scc1 L_end")
    stamp(a, 0)
    a("s_load_dwordx16 s[4:19], s[0:1], 0")
    a("v_lshrrev_b32 v22, 6, v0")
    pk = lambda h: h | (B[h] << 3) | (nh[h] << 11)
    mg = lambda h: (1 << 32) // (128 * nh[h]) + 1
    a("s_mov_b32 s43, 0x%x" % pk(0))
    a("v_readfirstlane_b32 s39, v22")
    a("s_mov_b32 s79, 0x%x" % mg(0))
    for h in range(1, 8):
        a("s_cmp_ge_u32 s2, %d" % B[h])
        a("s_cselect_b32 s43, 0x%x, s43" % pk(h))
        if mg(h) != mg(h - 1) or True:
            a("s_cselect_b32 s79, 0x%x, s79" % mg(h))
    a("""
    s_lshr_b32 s75, s43, 11
    s_bfe_u32 s76, s43, 0x80003
    s_and_b32 s67, s43, 7
    s_sub_u32 s38, s2, s76
    s_mul_i32 s40, s39, s75
    s_add_u32 s40, s40, s38
    s_lshl_b32 s45, s75, 3
    s_lshl_b32 s44, s75, 5
    s_lshl_b32 s80, s40, 2
    """)
    prev = 80
    for j in range(1, NSLOT):
        if j == 1:
            a("s_add_u32 s43, s80, s44")
        else:
            a("s_add_u32 s43, s43, s44")
        a("s_min_u32 s%d, s43, 0x1ffc" % (80 + j))
    a("s_waitcnt lgkmcnt(0)")
    stamp(a, 1)
    a("s_load_dword s%d, s[12:13], 0" % S_CL)
    for j in range(NSLOT):
        a("s_load_dword s%d, s[10:11], s%d" % (S_BT + j, 80 + j))
    a("""
    v_and_b32 v1, 63, v0
    s_lshl_b32 s44, s67, 10
    v_lshrrev_b32 v18, 4, v1
    v_bfe_u32 v22, v1, 2, 2
    v_and_b32 v23, 3, v1
    v_lshlrev_b32 v24, 4, v23
    v_lshl_add_u32 v24, v18, 6, v24
    v_lshl_add_u32 v26, v22, 8, v24
    v_add_u32 v26, s44, v26
    global_load_dwordx4 v[12:15], v26, s[4:5]
    s_lshl_b32 s44, s67, 8
    v_lshl_add_u32 v2, v22, 11, v24
    v_add_u32 v2, s44, v2
    v_add_u32 v3, 0x2000, v2
    v_add_u32 v4, 0x4000, v2
    v_add_u32 v5, 0x6000, v2
    v_and_b32 v25, 15, v1
    v_lshlrev_b32 v25, 4, v25
    v_lshl_add_u32 v6, v18, 11, v25
    v_add_u32 v6, s44, v6
    v_add_u32 v7, 0x2000, v6
    v_add_u32 v8, 0x4000, v6
    v_add_u32 v9, 0x6000, v6
    s_mov_b32 s20, s6
    s_mov_b32 s21, s7
    s_mov_b32 s22, %d
    s_mov_b32 s23, 0x00020000
    s_mov_b32 s24, s8
    s_mov_b32 s25, s9
    s_mov_b32 s26, %d
    s_mov_b32 s27, 0x00020000
    v_and_b32 v24, 1, v23
    v_lshlrev_b32 v24, 4, v24
    v_mov_b32 v25, 0xffff
    v_lshlrev_b32 v25, v24, v25
    v_cmp_gt_u32 vcc, 2, v23
    v_mov_b32 v17, 0xff800000
    v_mov_b32 v20, 0xff7fffff
    v_mov_b32 v21, 0
    v_cndmask_b32 v10, 0, v25, vcc
    v_cndmask_b32_e64 v11, v25, 0, vcc
    s_lshl_b32 s77, s75, 7
    s_lshl_b32 s43, s40, 4
    s_sub_u32 s90, s77, s43
    s_sub_u32 s90, s90, 1
    s_mov_b32 s91, %s
    """ % (KV_BYTES, KV_BYTES, f32(SCALE)))
    a("""
    s_mul_i32 s43, s39, {LW}
    v_mul_u32_u24 v32, 152, v22
    v_mul_u32_u24 v33, 36, v18
    v_add3_u32 v32, v32, v33, v23
    v_lshl_add_u32 v{T0}, v32, 2, s43
    s_lshl_b32 s44, s39, 3
    s_add_u32 s44, s44, {LML}
    v_lshl_add_u32 v{T1}, v22, 6, s44
    s_lshr_b32 s92, s39, 1
    s_and_b32 s93, s39, 1
    s_mul_i32 s43, s92, 608
    s_mul_i32 s44, s93, 288
    s_add_u32 s43, s43, s44
    v_bfe_u32 v34, v1, 3, 1
    v_and_b32 v35, 7, v1
    v_mul_u32_u24 v34, 144, v34
    v_lshl_add_u32 v34, v35, 4, v34
    v_add_u32 v{T2}, s43, v34
    s_lshl_b32 s43, s92, 6
    s_add_u32 s43, s43, {LML}
    v_mov_b32 v{T3}, s43
    s_lshl_b32 s43, s2, 10
    s_lshl_b32 s44, s39, 7
    s_add_u32 s43, s43, s44
    v_lshl_add_u32 v{T4}, v1, 3, s43
    s_lshl_b32 s43, s92, 3
    s_add_u32 s43, s43, s67
    s_lshl_b32 s43, s43, 9
    s_add_u32 s78, s43, {MLB}
    s_lshl_b32 s44, s38, 3
    s_add_u32 s43, s78, s44
    v_mov_b32 v{T5}, s43
    """.format(LW=LDS_WAVE, LML=LDS_ML, MLB=ML_BASE, T0=TV, T1=TV + 1, T2=TV + 2, T3=TV + 3, T4=TV + 4, T5=TV + 5))
    for r in range(8):
        a("v_mov_b32 v%d, 0" % (V_ACC + r))
    a("s_waitcnt lgkmcnt(0)")
    stamp(a, 2)
    a("""
    s_cmp_lt_i32 s66, 1
    s_cselect_b32 s66, 0x8000, s66
    s_cselect_b32 s91, 0, s91
    s_min_i32 s66, s66, 0x8000
    s_add_i32 s44, s66, s90
    s_max_i32 s44, s44, 0
    s_mul_hi_u32 s44, s44, s79
    s_sub_u32 s41, %d, s44
    """ % NSLOT)
    a("s_lshl_b32 s43, s40, 4")
    a("s_sub_i32 s42, s66, s43")
    a("v_mov_b32 v16, s91")
    a("s_cmp_ge_u32 s41, %d" % FIRST)
    a("s_cbranch_scc1 L_pl_%d" % FIRST)
    for e in range(NSLOT):
        a.label("L_pl_%d" % e)
        a("s_cmp_lg_u32 s41, %d" % e)
        a("s_cbranch_scc1 L_pl_%d" % (e + 1))
        for k in range(OPT["w"]):
            one_load(a, e, k, NSLOT)
        a("s_branch L_it_%d" % e)
    a.label("L_pl_%d" % NSLOT)
    a("s_branch L_it_%d" % NSLOT)
    for e in range(NSLOT):
        a.label("L_it_%d" % e)
        iteration(a, e, NSLOT)
    a.label("L_it_%d" % NSLOT)
    stamp(a, 6)
    for r in range(4):
        a("ds_write2_b32 v%d, v%d, v%d offset0:%d offset1:%d" % (TV + 0, V_ACC + r, V_ACC + 4 + r, 8 * r, 8 * r + 4))
    a("ds_write_b64 v%d, v[20:21]" % (TV + 1))
    a("s_waitcnt vmcnt(0) lgkmcnt(0)")
    a("s_barrier")
    stamp(a, 7)
    for q in range(4):
        a("ds_read_b128 v[%d:%d], v%d offset:%d" % (96 + 4 * q, 99 + 4 * q, TV + 3, 16 * q))
    for w in range(8):
        a("ds_read_b128 v[%d:%d], v%d offset:%d" % (64 + 4 * w, 67 + 4 * w, TV + 2, LDS_WAVE * w))
    a("s_waitcnt lgkmcnt(8)")
    m = [96 + 2 * w for w in range(8)]
    l = [97 + 2 * w for w in range(8)]
    a("v_max3_f32 v40, v%d, v%d, v%d" % (m[0], m[1], m[2]))
    a("v_max3_f32 v40, v40, v%d, v%d" % (m[3], m[4]))
    a("v_max3_f32 v40, v40, v%d, v%d" % (m[5], m[6]))
    a("v_max_f32 v40, v40, v%d" % m[7])
    for w in range(8):
        a("v_sub_f32 v%d, v%d, v40" % (m[w], m[w]))
    for w in range(8):
        a("v_exp_f32 v%d, v%d" % (m[w], m[w]))
    a("v_mul_f32 v41, v%d, v%d" % (m[0], l[0]))
    for w in range(1, 8):
        a("v_fmac_f32 v41, v%d, v%d" % (m[w], l[w]))
    a("s_waitcnt lgkmcnt(0)")
    for c in range(4):
        a("v_mul_f32 v%d, v%d, v%d" % (44 + c, m[0], 64 + c))
    for w in range(1, 8):
        for c in range(4):
            a("v_fmac_f32 v%d, v%d, v%d" % (44 + c, m[w], 64 + 4 * w + c))
    a("v_cvt_pk_bf16_f32 v44, v44, v45")
    a("v_cvt_pk_bf16_f32 v45, v46, v47")
    a("s_mov_b64 exec, 0xffff")
    a("global_store_dwordx2 v%d, v[44:45], s[18:19] sc1" % (TV + 4))
    a("s_mov_b64 exec, 1")
    a("global_store_dwordx2 v%d, v[40:41], s[18:19] sc1" % (TV + 5))
    a("s_mov_b64 exec, -1")
    a("""
    s_mov_b32 s68, s18
    s_mov_b32 s69, s19
    s_add_u32 s43, s76, s75
    s_lshl_b32 s70, s43, 10
    s_mov_b32 s71, 0x00020000
    s_mov_b32 s80, s18
    s_mov_b32 s81, s19
    s_lshl_b32 s43, s75, 3
    s_add_u32 s82, s78, s43
    s_mov_b32 s83, 0x00020000
    v_lshl_add_u32 v42, v1, 3, s78
    v_lshrrev_b32 v38, 3, v1
    v_and_b32 v48, 7, v1
    s_lshl_b32 s43, s76, 10
    s_lshl_b32 s44, s39, 7
    s_add_u32 s43, s43, s44
    v_lshlrev_b32 v39, 10, v38
    v_lshl_add_u32 v39, v48, 4, v39
    v_add_u32 v39, s43, v39
    v_lshlrev_b32 v38, 2, v38
    s_lshl_b32 s43, s67, 10
    s_add_u32 s43, s43, s44
    v_lshlrev_b32 v43, 4, v48
    v_lshrrev_b32 v49, 4, v1
    v_lshl_add_u32 v43, v49, 2, v43
    v_add_u32 v43, s43, v43
    s_movk_i32 s72, 0x2000
    s_movk_i32 s73, 0x4000
    s_movk_i32 s74, 0x6000
    s_mov_b32 s77, 0x8000
    s_lshl_b32 s43, s67, 5
    v_mov_b32 v2, s43
    v_mov_b32 v3, 1
    v_mov_b32 v5, 0
    s_waitcnt vmcnt(0)
    """)
    stamp(a, 8)
    a("s_barrier")
    a("s_cmp_lg_u32 s39, 0")
    a("s_cbranch_scc1 L_noat")
    a("s_mov_b64 exec, 1")
    a("global_atomic_add v4, v2, v3, s[16:17] sc0")
    a("s_waitcnt vmcnt(0)")
    a("ds_write_b32 v5, v4")
    a("s_mov_b64 exec, -1")
    a("s_waitcnt lgkmcnt(0)")
    a.label("L_noat")
    a("s_barrier")
    a("ds_read_b32 v4, v5")
    a("s_sub_u32 s44, s75, 1")
    a("s_waitcnt lgkmcnt(0)")
    a("v_readfirstlane_b32 s43, v4")
    stamp(a, 9)
    a("s_cmp_lg_u32 s43, s44")
    a("s_cbranch_scc1 L_fin")
    KR = 5
    O = [64 + 4 * k for k in range(KR)]
    a("buffer_load_dwordx2 v[8:9], v42, s[80:83], 0 offen sc1")
    for k in range(KR):
        so = ["0", "s72", "s73", "s74", "s77"][k]
        a("buffer_load_dwordx4 v[%d:%d], v39, s[68:71], %s offen sc1" % (O[k], O[k] + 3, so))
    a("v_mov_b32 v10, 0xff7fffff")
    a("s_waitcnt vmcnt(%d)" % KR)
    if OPT.get("fst"):
        stamp(a, 4)
    a("v_cmp_eq_f32 vcc, 0, v9")
    a("v_cndmask_b32 v8, v8, v10, vcc")
    a("v_mov_b32 v10, v8")
    for rot in (8, 4, 2, 1):
        a("v_max_f32_dpp v10, v10, v10 row_ror:%d row_mask:0xf bank_mask:0xf" % rot)
    xq(a, "v_max_f32", [10], [11])
    a("v_sub_f32 v8, v8, v10")
    a("v_exp_f32 v8, v8")
    a("v_mul_f32 v9, v8, v9")
    for k in range(KR):
        a("ds_bpermute_b32 v%d, v38, v8 offset:%d" % (12 + k, 32 * k))
    for rot in (8, 4, 2, 1):
        a("v_add_f32_dpp v9, v9, v9 row_ror:%d row_mask:0xf bank_mask:0xf" % rot)
    xq(a, "v_add_f32", [9], [11])
    a("v_rcp_f32 v9, v9")
    a("s_mov_b32 s43, 0xffff0000")
    a("s_waitcnt vmcnt(0) lgkmcnt(0)")
    if OPT.get("fst"):
        stamp(a, 5)
    ACC = [20 + i for i in range(8)]
    for k in range(KR):
        for q in range(4):
            a("v_lshlrev_b32 v%d, 16, v%d" % (30 + 2 * q, O[k] + q))
            a("v_and_b32 v%d, s43, v%d" % (31 + 2 * q, O[k] + q))
        for i in range(8):
            if k == 0:
                a("v_mul_f32 v%d, v%d, v%d" % (ACC[i], 12 + k, 30 + i))
            else:
                a("v_fmac_f32 v%d, v%d, v%d" % (ACC[i], 12 + k, 30 + i))
    for i in range(4):
        a("v_permlane32_swap_b32 v%d, v%d" % (ACC[i], ACC[i + 4]))
    for i in range(4):
        a("v_add_f32 v%d, v%d, v%d" % (ACC[i], ACC[i], ACC[i + 4]))
    for i in range(2):
        a("v_permlane16_swap_b32 v%d, v%d" % (ACC[i], ACC[i + 2]))
    for i in range(2):
        a("v_add_f32 v%d, v%d, v%d" % (ACC[i], ACC[i], ACC[i + 2]))
    for i in range(2):
        a("v_add_f32_dpp v%d, v%d, v%d row_ror:8 row_mask:0xf bank_mask:0xf" % (ACC[i], ACC[i], ACC[i]))
    for i in range(2):
        a("v_mul_f32 v%d, v%d, v9" % (ACC[i], ACC[i]))
    a("v_cvt_pk_bf16_f32 v16, v%d, v%d" % (ACC[0], ACC[1]))
    a("s_mov_b32 exec_lo, 0x00ff00ff")
    a("s_mov_b32 exec_hi, 0x00ff00ff")
    a("global_store_dword v43, v16, s[14:15]")
    if OPT.get("fst"):
        stamp(a, 3)
    if OPT["diag"]:
        a("s_waitcnt vmcnt(0)")
    a.label("L_fin")
    stamp(a, 10)
    dump_stamps(a, 11)
    a.label("L_end")
    a("s_endpgm")


def kd(name, vgpr, sgpr):
    acc = (vgpr + 3) // 4 * 4
    return """.p2align 6
.amdhsa_kernel %s
  .amdhsa_next_free_vgpr %d
  .amdhsa_next_free_sgpr %d
  .amdhsa_accum_offset %d
  .amdhsa_group_segment_fixed_size 0
  .amdhsa_kernarg_size 64
  .amdhsa_user_sgpr_count 2
  .amdhsa_user_sgpr_kernarg_segment_ptr 1
  .amdhsa_system_sgpr_workgroup_id_x 1
.end_amdhsa_kernel
""" % (name, vgpr, sgpr, acc)


def main():
    for arg in sys.argv[2:]:
        k, _, v = arg.partition("=")
        if k == "ld":
            OPT["ld"] = (" " + v.replace("+", " ")) if v else ""
        elif k == "nh":
            OPT["nh"] = v
        elif k == "nb":
            global NB
            NB = int(v)
        else:
            OPT[k] = int(v) if v else 1
    out = list(HEADER)
    out.append("; @launch grid=(256,1,1) block=(512,1,1) lds=%d" % LDS_TOTAL)
    out.append('.amdgcn_target "amdgcn-amd-amdhsa--gfx950"')
    out.append(".text")
    a = Asm()
    gen(a)
    nm = NAME + "_kernel"
    out.append(".globl %s\n.p2align 8\n.type %s,@function\n%s:" % (nm, nm, nm))
    out.append(a.text())
    out.append('.section .rodata,"a"')
    out.append(kd(nm, max(BUF0 + 32 * NB + 8, 136), 100))
    open(sys.argv[1], "w").write("\n".join(out))


if __name__ == "__main__":
    main()
```
